```python
import torch

def _softmax(x, axis=-1):
    return torch.softmax(x, dim=axis)
def _gelu(x):
    return torch.nn.functional.gelu(x, approximate="tanh")
def _silu(x):
    return torch.nn.functional.silu(x)
def _sigmoid(x):
    return torch.sigmoid(x)
def _layernorm(x, axis=-1, eps=1e-5):
    m = x.mean(dim=axis, keepdim=True)
    v = x.var(dim=axis, keepdim=True, unbiased=False)
    return (x - m) / torch.sqrt(v + eps)
def _scatter_add(tgt, idx, src, axis=0):
    return tgt.clone().index_add_(axis, idx, src)
def _segment_sum(src, seg, n):
    out = torch.zeros((n,) + src.shape[1:], dtype=src.dtype)
    return out.index_add_(0, seg, src)
def _pad(x, pw):
    flat = tuple(v for pair in reversed(pw) for v in pair)
    return torch.nn.functional.pad(x, flat)

kernel_name = 'gated_mix__softmax_full_mha__moe_arch_mod__prompt'

def setup_inputs():

    _w = (lambda a: (lambda t: t.to(torch.bfloat16) if t.is_floating_point() else t)(torch.as_tensor(a)))
    def _A_setup():
        B, S, D = 1, 2048, 448
        return {
            "x": _w((lambda *s: torch.randn(*s, dtype=torch.bfloat16) * 0.05)(B, S, D)),
            "wqkv": _w((lambda *s: torch.randn(*s, dtype=torch.bfloat16) * 1.6)(D, 3 * D)),
            "wo": _w((lambda *s: torch.randn(*s, dtype=torch.bfloat16) * 0.1)(D, D)),
        }
    _A_in = _A_setup()

    def _B_setup():
        B, S, D, F, C = 1, 2048, 448, 1792, 8
        return {
            "x": _w((lambda *s: torch.randn(*s, dtype=torch.bfloat16) * 0.05)(B, S, D)),
            "w_r": _w((lambda *s: torch.randn(*s, dtype=torch.bfloat16) * 3.2)(D)),
            "w_gate": _w((lambda *s: torch.randn(*s, dtype=torch.bfloat16) * 0.4)(D, F)),
            "w_up": _w((lambda *s: torch.randn(*s, dtype=torch.bfloat16) * 0.4)(D, F)),
            "w_down": _w((lambda *s: torch.randn(*s, dtype=torch.bfloat16) * 0.4)(F, D)),
        }
    _B_in = _B_setup()

    return {
        "A_x": _A_in["x"],
        "A_wqkv": _A_in["wqkv"],
        "A_wo": _A_in["wo"],
        "B_x": _B_in["x"],
        "B_w_r": _B_in["w_r"],
        "B_w_gate": _B_in["w_gate"],
        "B_w_up": _B_in["w_up"],
        "B_w_down": _B_in["w_down"],
        "gate_w": _w((lambda *s: torch.randn(*s, dtype=torch.bfloat16) * 0.05)(448) * 16.0),
    }

def reference(A_x, A_wqkv, A_wo, B_x, B_w_r, B_w_gate, B_w_up, B_w_down, gate_w):
    def _A_ref(x, wqkv, wo):
        B, S, D = x.shape
        H = 16; Dh = D // H
        qkv = (lambda x, *d: x.permute(*d))((x @ wqkv).reshape(B, S, 3, H, Dh), 2, 0, 3, 1, 4)
        q, k, v = qkv[0], qkv[1], qkv[2]
        scale = Dh ** -0.5
        scores = torch.einsum("bhqd,bhkd->bhqk", q, k) * scale
        p = _softmax(scores, axis=-1)
        o = torch.einsum("bhqk,bhkd->bhqd", p, v)
        return (lambda x, *d: x.permute(*d))(o, 0, 2, 1, 3).reshape(B, S, D) @ wo

    def _B_ref(x, w_r, w_gate, w_up, w_down):
        B, S, D = x.shape
        C = 8
        r = x @ w_r
        idx = torch.argsort(-r, axis=-1)[:, :C]
        idx_e = (lambda x, n, axis: torch.repeat_interleave(x, n, dim=axis))(idx.reshape(B, C, 1), D, axis=2)
        x_sel = (lambda x, i, axis: torch.take_along_dim(x, i, dim=axis))(x, idx_e, axis=1)
        g = _silu(x_sel @ w_gate)
        u = x_sel @ w_up
        y = (g * u) @ w_down
        r_sel = _sigmoid((lambda x, i, axis: torch.take_along_dim(x, i, dim=axis))(r, idx, axis=1))
        y = y * r_sel.reshape(B, C, 1)
        b_off = (torch.arange(B) * S).reshape(B, 1)
        flat_idx = (idx + b_off).reshape(B * C)
        zero = (x * 0.0).reshape(B * S, D)
        upd = _scatter_add(zero, flat_idx, y.reshape(B * C, D), axis=0)
        return x + upd.reshape(B, S, D)

    x = A_x
    g = _sigmoid((x * gate_w).sum(-1, keepdims=True))
    a = _A_ref(x, A_wqkv, A_wo)
    b = _B_ref(x, B_w_r, B_w_gate, B_w_up, B_w_down)
    return g * a + (1 - g) * b
```

```python
import sys, math, struct

NAME = "gated_mix__softmax_full_mha__moe_arch_mod__prompt"

WS_Q = 0
WS_KV = 0x200000
WS_O = 0x600000
WS_G = 0x800000
WS_CAND = 0x802000
WS_SEL = 0x803000
WS_Y = 0x810000
WS_SIZE = 0x900000
NMOE = 56

def f32bits(x):
    return struct.unpack("<I", struct.pack("<f", x))[0]

LOG2E = 1.4426950408889634
QSCALE = (28 ** -0.5) * LOG2E


class A:
    def __init__(self):
        self.l = []
    def __call__(self, s):
        for line in s.strip("\n").split("\n"):
            line = line.strip()
            if not line:
                continue
            if line.endswith(":") or line.startswith("."):
                self.l.append(line)
            else:
                self.l.append("    " + line)
    def text(self):
        return "\n".join(self.l) + "\n"


def vr(b, n):
    return f"v[{b}:{b+n-1}]"


def srd(a, d, lo, hi, size):
    a(f"""
    s_mov_b32 s{d}, s{lo}
    s_and_b32 s{d+1}, s{hi}, 0xffff
    s_mov_b32 s{d+2}, {size:#x}
    s_mov_b32 s{d+3}, 0x20000
    """)


def kd(name, vgpr, sgpr=96):
    v4 = (vgpr + 3) // 4 * 4
    return f""".p2align 6
.amdhsa_kernel {name}
  .amdhsa_next_free_vgpr {vgpr}
  .amdhsa_next_free_sgpr {sgpr}
  .amdhsa_accum_offset {v4}
  .amdhsa_group_segment_fixed_size 0
  .amdhsa_kernarg_size 96
  .amdhsa_user_sgpr_count 2
  .amdhsa_user_sgpr_kernarg_segment_ptr 1
  .amdhsa_system_sgpr_workgroup_id_x 1
.end_amdhsa_kernel
"""


def head(a, name):
    a(f""".globl {name}
.p2align 8
.type {name},@function
{name}:""")


MF = "v_mfma_f32_32x32x16_bf16"
SM = "v_smfmac_f32_32x32x32_bf16"
HI = "0xffffffff00000000"

KSTR = 3392
K1_KEYS = 28 * KSTR
K1_LDS = K1_KEYS + 512


def gen_k1(a):
    head(a, "qkv_kernel")
    X = 16
    WF = 128
    AQ, AK, AV = 152, 168, 184
    a(f"""
    s_cmp_ge_u32 s2, 256
    s_cbranch_scc1 K1_end
    s_load_dwordx4 s[4:7], s[0:1], 0
    s_load_dwordx2 s[28:29], s[0:1], 32
    s_load_dwordx2 s[30:31], s[0:1], 64
    s_load_dwordx2 s[32:33], s[0:1], 88
    v_lshrrev_b32 v2, 6, v0
    v_and_b32 v1, 63, v0
    s_and_b32 s34, s2, 7
    s_lshr_b32 s35, s2, 3
    v_readfirstlane_b32 s26, v2
    s_and_b32 s24, s34, 1
    s_lshl_b32 s24, s24, 3
    s_and_b32 s36, s35, 7
    s_add_u32 s24, s24, s36
    s_lshr_b32 s25, s34, 1
    s_lshl_b32 s25, s25, 2
    s_lshr_b32 s36, s35, 3
    s_add_u32 s25, s25, s36
    s_lshl_b32 s27, s25, 2
    s_add_u32 s27, s27, s26
    """)
    a(f"""
    v_and_b32 v5, 31, v1
    s_lshl_b32 s36, s27, 5
    v_add_u32 v3, s36, v5
    v_mul_u32_u24 v4, 896, v3
    v_lshrrev_b32 v6, 5, v1
    v_lshl_add_u32 v4, v6, 4, v4
    v_lshrrev_b32 v7, 2, v1
    v_mul_u32_u24 v7, 2688, v7
    v_and_b32 v8, 3, v1
    v_lshl_add_u32 v7, v8, 4, v7
    s_mul_i32 s36, s24, 56
    v_add_u32 v7, s36, v7
    v_lshlrev_b32 v9, 1, v0
    s_waitcnt lgkmcnt(0)
    """)
    srd(a, 8, 4, 5, 2048 * 896)
    srd(a, 12, 6, 7, 448 * 2688)
    srd(a, 16, 32, 33, WS_SIZE)
    srd(a, 20, 28, 29, 896)
    srd(a, 28, 30, 31, 896)
    return X, WF, AQ, AK, AV


def gen_k1_full(a):
    X, WF, AQ, AK, AV = gen_k1(a)
    a(f"""
    buffer_load_ushort v10, v9, s[20:23], 0 offen
    buffer_load_ushort v11, v9, s[28:31], 0 offen
    buffer_load_ushort v12, v9, s[20:23], 0 offen offset:512
    buffer_load_ushort v13, v9, s[28:31], 0 offen offset:512
    s_mul_i32 s36, s26, {16*2688}
    s_mul_i32 s37, s26, {KSTR}
    """)
    for g in range(7):
        for seg in range(3):
            a(f"""
            s_add_u32 m0, s37, {g*4*KSTR + seg*1024}
            s_add_u32 s38, s36, {g*4*16*2688 + seg*896}
            buffer_load_dwordx4 v7, s[12:15], s38 offen lds
            """)
        for s in range(4 * g, 4 * g + 4):
            a(f"buffer_load_dwordx4 {vr(X+4*s,4)}, v4, s[8:11], 0 offen offset:{32*s}")
    a(f"""
    v_lshrrev_b32 v14, 4, v0
    v_mul_u32_u24 v14, {KSTR}, v14
    v_bfe_u32 v2, v0, 2, 1
    v_lshl_add_u32 v14, v2, 8, v14
    v_bfe_u32 v2, v0, 3, 1
    v_lshl_add_u32 v14, v2, 5, v14
    v_lshl_add_u32 v14, v8, 3, v14
    v_bfe_u32 v2, v1, 2, 2
    v_lshlrev_b32 v15, 9, v6
    v_lshl_add_u32 v15, v2, 6, v15
    v_lshl_add_u32 v15, v8, 3, v15
    v_bfe_u32 v9, v1, 4, 1
    v_lshl_add_u32 v15, v9, 5, v15
    v_lshlrev_b32 v2, 3, v2
    v_lshl_add_u32 v2, v6, 5, v2
    v_add_u32 v2, 3072, v2
    v_and_b32 v9, 19, v1
    v_cmp_eq_u32 vcc, 19, v9
    s_nop 1
    v_cndmask_b32 v2, v15, v2, vcc
    s_waitcnt vmcnt(49)
    v_lshl_or_b32 v10, v11, 16, v10
    v_lshl_or_b32 v12, v13, 16, v12
    ds_write_b32 v14, v10 offset:3072
    s_cmp_eq_u32 s26, 3
    s_cbranch_scc1 K1_notab
    ds_write_b32 v14, v12 offset:{3072 + 16*KSTR}
K1_notab:
    s_waitcnt lgkmcnt(0)
    """)

    def reads(s):
        b = WF + 12 * (s % 2)
        if s % 4 == 0:
            g = s // 4
            a(f"s_waitcnt vmcnt({7*(6-g)})\ns_barrier")
        if s == 14:
            a(f"v_add_u32 v2, {14*KSTR}, v2\nv_add_u32 v15, {14*KSTR}, v15")
        o = (s % 14) * KSTR
        a(f"""
        ds_read_b64_tr_b16 {vr(b+4,2)}, v15 offset:{o+1024}
        ds_read_b64_tr_b16 {vr(b+6,2)}, v15 offset:{o+1024+256}
        ds_read_b64_tr_b16 {vr(b+8,2)}, v15 offset:{o+2048}
        ds_read_b64_tr_b16 {vr(b+10,2)}, v15 offset:{o+2048+256}
        ds_read_b64_tr_b16 {vr(b,2)}, v2 offset:{o}
        ds_read_b64_tr_b16 {vr(b+2,2)}, v2 offset:{o+256}
        """)

    reads(0)
    for s in range(28):
        if s + 1 < 28:
            reads(s + 1)
            a("s_waitcnt lgkmcnt(6)")
        else:
            a("s_waitcnt lgkmcnt(0)")
        b = WF + 12 * (s % 2)
        x = vr(X + 4 * s, 4)
        c = lambda r: "0" if s == 0 else vr(r, 16)
        a(f"""
        {MF} {vr(AK,16)}, {vr(b+4,4)}, {x}, {c(AK)}
        {MF} {vr(AV,16)}, {x}, {vr(b+8,4)}, {c(AV)}
        {MF} {vr(AQ,16)}, {vr(b,4)}, {x}, {c(AQ)}
        """)
    PK, PV, PQ, SD = 16, 24, 32, 48
    a(f"""
    s_lshl_b32 s36, s24, 6
    s_add_u32 s36, s36, s27
    s_lshl_b32 s37, s36, 12
    s_add_u32 s37, s37, {WS_KV}
    s_lshl_b32 s36, s36, 11
    v_lshlrev_b32 v9, 4, v1
    v_and_b32 v10, 0x33, v1
    v_bfe_u32 v11, v1, 2, 1
    v_lshl_or_b32 v10, v11, 3, v10
    v_bfe_u32 v11, v1, 3, 1
    v_lshl_or_b32 v10, v11, 2, v10
    v_lshlrev_b32 v10, 4, v10
    v_cmp_eq_u32 vcc, 28, v5
    v_mov_b32 v11, 0x3f803f80
    s_mov_b32 s40, {f32bits(QSCALE):#x}
    v_cndmask_b32 v11, 0, v11, vcc
    s_mov_b32 s41, s40
    """)
    for i in range(8):
        a(f"v_cvt_pk_bf16_f32 v{PK+i}, v{AK+2*i}, v{AK+2*i+1}")
    for i in range(8):
        a(f"v_cvt_pk_bf16_f32 v{PV+i}, v{AV+2*i}, v{AV+2*i+1}")
    a(f"""
    s_mov_b32 exec_lo, 0xf0000000
    s_mov_b32 exec_hi, 0xf0000000
    """)
    for i in range(8):
        a(f"v_mov_b32 v{PV+i}, v11")
    a(f"""
    s_mov_b32 exec_lo, 0
    s_mov_b32 exec_hi, -1
    v_mov_b32 v{PK+6}, 0x3f80
    v_mov_b32 v{PK+7}, 0
    v_cvt_pk_bf16_f32 v12, v{AQ+12}, v{AQ+12}
    v_sub_u32 v13, 2047, v3
    v_ashrrev_i32 v14, 31, v12
    v_or_b32 v14, 0x80000000, v14
    v_xor_b32 v12, v12, v14
    v_and_b32 v12, 0xffff0000, v12
    v_or_b32 v12, v12, v13
    s_lshl_b32 s38, s26, 7
    v_lshl_add_u32 v13, v5, 2, s38
    v_add_u32 v13, {K1_KEYS}, v13
    ds_write_b32 v13, v12
    s_cmp_lg_u32 s24, 0
    s_cbranch_scc1 K1_nog
    v_lshlrev_b32 v13, 2, v3
    s_mov_b32 s38, {WS_G}
    buffer_store_dword v{AQ+13}, v13, s[16:19], s38 offen
K1_nog:
    s_mov_b64 exec, -1
    buffer_store_dwordx4 {vr(PK,4)}, v10, s[16:19], s37 offen
    buffer_store_dwordx4 {vr(PK+4,4)}, v10, s[16:19], s37 offen offset:1024
    buffer_store_dwordx4 {vr(PV,4)}, v9, s[16:19], s37 offen offset:2048
    buffer_store_dwordx4 {vr(PV+4,4)}, v9, s[16:19], s37 offen offset:3072
    """)
    T = 64
    for i in range(8):
        a(f"v_pk_mul_f32 {vr(T+2*i,2)}, {vr(AQ+2*i,2)}, s[40:41]")
    for i in range(8):
        a(f"v_cvt_pk_bf16_f32 v{PQ+i}, v{T+2*i}, v{T+2*i+1}")
    a(f"""
    s_mov_b32 exec_lo, 0
    v_mov_b32 v{PQ+6}, 0
    v_mov_b32 v{PQ+7}, 0
    s_mov_b32 exec_lo, -1
    s_nop 1
    {MF} {vr(SD,16)}, {vr(PK,4)}, {vr(PQ,4)}, 0
    {MF} {vr(SD,16)}, {vr(PK+4,4)}, {vr(PQ+4,4)}, {vr(SD,16)}
    s_waitcnt lgkmcnt(0)
    s_barrier
    """)
    a(f"""
    s_lshl_b32 s38, s24, 3
    s_lshl_b32 s39, s26, 1
    s_add_u32 s38, s38, s39
    s_lshl_b32 s38, s38, 2
    s_add_u32 s38, s38, {K1_KEYS}
    v_lshl_add_u32 v12, v6, 2, s38
    v_lshlrev_b32 v13, 4, v5
    v_add_u32 v13, {K1_KEYS}, v13
    ds_read_b32 v14, v12
    ds_read_b128 v[80:83], v13
    s_nop 3
    v_max3_f32 v84, v{SD}, v{SD+1}, v{SD+2}
    v_max3_f32 v85, v{SD+3}, v{SD+4}, v{SD+5}
    v_max3_f32 v86, v{SD+6}, v{SD+7}, v{SD+8}
    v_max3_f32 v87, v{SD+9}, v{SD+10}, v{SD+11}
    v_max3_f32 v88, v{SD+12}, v{SD+13}, v{SD+14}
    v_max3_f32 v84, v84, v85, v{SD+15}
    v_max3_f32 v86, v86, v87, v88
    v_max_f32 v84, v84, v86
    v_mov_b32 v85, v84
    s_nop 1
    v_permlane32_swap_b32 v84, v85
    s_nop 1
    v_max_f32 v84, v84, v85
    s_mov_b32 exec_lo, 0
    v_cvt_pk_bf16_f32 v{PQ+6}, -v84, 0
    s_mov_b32 exec_lo, -1
    buffer_store_dwordx4 {vr(PQ,4)}, v9, s[16:19], s36 offen
    buffer_store_dwordx4 {vr(PQ+4,4)}, v9, s[16:19], s36 offen offset:1024
    s_waitcnt lgkmcnt(0)
    v_cmp_gt_u32 s[42:43], v80, v14
    v_cmp_gt_u32 s[44:45], v81, v14
    v_cmp_gt_u32 s[46:47], v82, v14
    v_cmp_gt_u32 s[48:49], v83, v14
    s_nop 3
    s_bcnt1_i32_b32 s42, s42
    s_bcnt1_i32_b32 s43, s43
    s_bcnt1_i32_b32 s44, s44
    s_bcnt1_i32_b32 s45, s45
    s_bcnt1_i32_b32 s46, s46
    s_bcnt1_i32_b32 s47, s47
    s_bcnt1_i32_b32 s48, s48
    s_bcnt1_i32_b32 s49, s49
    s_add_u32 s42, s42, s44
    s_add_u32 s46, s46, s48
    s_add_u32 s42, s42, s46
    s_add_u32 s43, s43, s45
    s_add_u32 s47, s47, s49
    s_add_u32 s43, s43, s47
    v_mov_b32 v12, s42
    s_mov_b32 exec_lo, 0
    v_mov_b32 v12, s43
    s_mov_b32 exec_lo, 1
    s_mov_b32 exec_hi, 1
    v_cmp_gt_u32 vcc, 8, v12
    s_lshl_b32 s38, s25, 5
    s_add_u32 s38, s38, {WS_CAND}
    v_lshlrev_b32 v12, 2, v12
    s_and_b64 exec, exec, vcc
    s_cbranch_execz K1_end
    buffer_store_dword v14, v12, s[16:19], s38 offen
K1_end:
    s_endpgm
    """)
    return 200


K2_LDS = 57344 + 4096 + 1024


def gen_k2(a):
    head(a, "attn_kernel")
    Q, O, S, KV = 16, 48, 112, 176
    NB = 4
    a(f"""
    s_cmp_ge_u32 s2, {256+NMOE}
    s_cbranch_scc1 K2_end
    s_load_dwordx2 s[32:33], s[0:1], 88
    v_lshrrev_b32 v2, 6, v0
    v_and_b32 v1, 63, v0
    s_cmp_ge_u32 s2, 256
    v_readfirstlane_b32 s26, v2
    s_cbranch_scc1 K2_moe
    s_and_b32 s24, s2, 7
    s_lshl_b32 s24, s24, 1
    s_bfe_u32 s34, s2, 0x10003
    s_add_u32 s24, s24, s34
    s_lshr_b32 s25, s2, 4
    v_lshlrev_b32 v3, 4, v1
    s_lshl_b32 s34, s24, 18
    s_lshl_b32 s35, s26, 16
    s_add_u32 s34, s34, s35
    s_add_u32 s34, s34, {WS_KV}
    s_lshl_b32 s36, s24, 6
    s_lshl_b32 s37, s25, 2
    s_add_u32 s36, s36, s37
    s_waitcnt lgkmcnt(0)
    """)
    srd(a, 16, 32, 33, WS_SIZE)

    def kvload(buf, part):
        a(f"buffer_load_dwordx4 {vr(KV+16*buf+4*part,4)}, v3, s[16:19], s34 offen offset:{1024*part}")

    def qload(i):
        a(f"""
        s_add_u32 s38, s26, {i+1}
        s_and_b32 s38, s38, 3
        s_add_u32 s38, s38, s36
        s_lshl_b32 s38, s38, 11
        buffer_load_dwordx4 {vr(Q+8*i,4)}, v3, s[16:19], s38 offen
        buffer_load_dwordx4 {vr(Q+8*i+4,4)}, v3, s[16:19], s38 offen offset:1024
        """)
    qload(0)
    kvload(0, 0); kvload(0, 1)
    qload(1); qload(2); qload(3)
    kvload(0, 2); kvload(0, 3)
    for b in (1, 2):
        a("s_add_u32 s34, s34, 4096")
        for p in range(4):
            kvload(b, p)
    a("v_mov_b32 v2, 0xdddddddd")
    for i in range(64):
        a(f"v_mov_b32 v{O+i}, 0")
    for i in range(3):
        a(f"""
        s_add_u32 s38, s26, {i+1}
        s_and_b32 s38, s38, 3
        s_mul_i32 s38, s38, 12288
        s_add_u32 s38, s38, {(2-i)*4096}
        v_add_u32 v{4+i}, s38, v3
        """)
    a(f"""
    s_mul_i32 s38, s26, 12288
    v_add_u32 v7, s38, v3
    s_mov_b32 s40, 3
    """)

    def QKa(sb, buf, q):
        a(f"{MF} {vr(S+16*sb,16)}, {vr(KV+16*buf,4)}, {vr(Q+8*q,4)}, 0")
    def QKb(sb, buf, q):
        a(f"{MF} {vr(S+16*sb,16)}, {vr(KV+16*buf+4,4)}, {vr(Q+8*q+4,4)}, {vr(S+16*sb,16)}")
    def PVa(sb, buf, q):
        a(f"{SM} {vr(O+16*q,16)}, {vr(KV+16*buf+8,4)}, {vr(S+16*sb,8)}, v2")
    def PVb(sb, buf, q):
        a(f"{SM} {vr(O+16*q,16)}, {vr(KV+16*buf+12,4)}, {vr(S+16*sb+8,8)}, v2")
    def EX(sb, lo, hi):
        for i in range(lo, hi):
            a(f"v_exp_f32 v{S+16*sb+i}, v{S+16*sb+i}")

    for i in range(16):
        a(f"v_mov_b32 v{S+48+i}, 0")
    for i in range(8):
        a(f"v_mov_b32 v{KV+48+8+i}, 0")
    a("s_waitcnt vmcnt(16)")
    QKa(0, 0, 0); QKb(0, 0, 0)
    a("s_waitcnt vmcnt(10)\ns_nop 9")

    def slot(u, cur, nxt, prv, extra):
        sb = u % 4
        def ex(p):
            if p in extra:
                extra[p]()
        ex("pre")
        if nxt:
            QKa((u + 1) % 4, *nxt)
        ex(0)
        EX(sb, 0, 4)
        if nxt:
            QKb((u + 1) % 4, *nxt)
        ex(1)
        EX(sb, 4, 8)
        ex("prepv")
        if prv:
            PVa((u - 1) % 4, *prv)
        ex(2)
        EX(sb, 8, 12)
        if prv:
            PVb((u - 1) % 4, *prv)
        ex(3)
        EX(sb, 12, 16)

    a(".p2align 3\nK2_loop:")
    for u in range(16):
        kt, q = u // 4, u % 4
        cur = (kt, q)
        nxt = (((u + 1) // 4) % 4, (u + 1) % 4)
        prv = (((u - 1) // 4) % 4, (u - 1) % 4)
        extra = {}
        lb = (kt - 1) % 4
        if q == 0:
            extra[0] = lambda lb=lb: (a("s_add_u32 s34, s34, 4096"), kvload(lb, 0))
        else:
            extra[0] = lambda lb=lb, q=q: kvload(lb, q)
        if q == 3:
            extra["pre"] = lambda: a("s_waitcnt vmcnt(9)")
        if q == 1:
            extra["prepv"] = lambda: a("s_waitcnt vmcnt(10)")
        if u == 15:
            extra[3] = lambda: a("s_sub_u32 s40, s40, 1\ns_cmp_lg_u32 s40, 0")
        slot(u, cur, nxt, prv, extra)
    a("s_cbranch_scc1 K2_loop")

    seq = [(0, q) for q in range(4)] + [(b, q) for q in range(4) for b in (1, 2, 3)]
    def wr(q, lo, hi):
        for j in range(lo, hi):
            a(f"ds_write_b128 v{4+q}, {vr(O+16*q+4*j,4)} offset:{1024*j}")
    def rd(i, lo, hi):
        for j in range(lo, hi):
            a(f"ds_read_b128 {vr(O+16*i+4*j,4)}, v7 offset:{4096*i+1024*j}")
    for u in range(16):
        cur = seq[u]
        nxt = seq[u + 1] if u + 1 < 16 else None
        prv = seq[u - 1] if u > 0 else (3, 3)
        extra = {}
        if u == 0:
            extra[0] = lambda: (a("s_add_u32 s34, s34, 4096"), kvload(3, 0))
            extra[1] = lambda: kvload(3, 1)
        if u == 1:
            extra[0] = lambda: kvload(3, 2)
            extra[1] = lambda: kvload(3, 3)
            extra["prepv"] = lambda: a("s_waitcnt vmcnt(12)")
        if u == 3:
            extra["pre"] = lambda: a("s_waitcnt vmcnt(4)")
        if u == 5:
            extra["pre"] = lambda: a("s_waitcnt vmcnt(2)")
        if u == 7:
            extra["prepv"] = lambda: a("s_waitcnt vmcnt(0)")
        for q in range(3):
            if u == 8 + 3 * q:
                extra[2] = lambda q=q: wr(q, 0, 2)
                extra[3] = lambda q=q: wr(q, 2, 4)
        if u == 15:
            break
        slot(u, cur, nxt, prv, extra)
    EX(3, 0, 2)
    PVa(2, *seq[14])
    a("s_waitcnt lgkmcnt(0)\ns_barrier")
    rd(0, 0, 4)
    EX(3, 2, 6)
    PVb(2, *seq[14])
    rd(1, 0, 4)
    EX(3, 6, 10)
    PVa(3, *seq[15])
    rd(2, 0, 4)
    EX(3, 10, 16)
    a("s_waitcnt lgkmcnt(4)")
    a(f"v_pk_add_f32 {vr(O,2)}, {vr(O,2)}, {vr(O+16,2)}")
    PVb(3, *seq[15])
    for i in range(1, 8):
        a(f"v_pk_add_f32 {vr(O+2*i,2)}, {vr(O+2*i,2)}, {vr(O+16+2*i,2)}")
    a("s_waitcnt lgkmcnt(0)")
    for i in range(8):
        a(f"v_pk_add_f32 {vr(O+2*i,2)}, {vr(O+2*i,2)}, {vr(O+32+2*i,2)}")
    for i in range(8):
        a(f"v_pk_add_f32 {vr(O+2*i,2)}, {vr(O+2*i,2)}, {vr(O+48+2*i,2)}")
    T = S
    a(f"""
    v_mov_b32 v8, v{O+12}
    v_mov_b32 v9, v{O+12}
    v_pk_add_f32 {vr(T,2)}, {vr(O,2)}, {vr(O+2,2)}
    v_pk_add_f32 {vr(T+2,2)}, {vr(O+4,2)}, {vr(O+6,2)}
    v_permlane32_swap_b32 v8, v9
    v_pk_add_f32 {vr(T+4,2)}, {vr(O+8,2)}, {vr(O+10,2)}
    v_pk_add_f32 {vr(T+6,2)}, {vr(O+12,2)}, {vr(O+14,2)}
    v_rcp_f32 v10, v9
    v_pk_add_f32 {vr(T,2)}, {vr(T,2)}, {vr(T+2,2)}
    v_pk_add_f32 {vr(T+4,2)}, {vr(T+4,2)}, {vr(T+6,2)}
    s_mov_b32 s42, {f32bits(2.0**60):#x}
    v_pk_add_f32 {vr(T,2)}, {vr(T,2)}, {vr(T+4,2)}
    v_cmp_gt_f32 s[44:45], s42, v9
    v_add_f32 v{T}, v{T}, v{T+1}
    v_cmp_gt_f32 s[46:47], s42, v10
    s_movk_i32 s43, 0x1f8
    v_cmp_class_f32 vcc, v{T}, s43
    s_and_b64 s[44:45], s[44:45], s[46:47]
    s_nop 0
    s_and_b64 s[44:45], s[44:45], vcc
    s_cmp_eq_u64 s[44:45], -1
    s_cbranch_scc0 K2_fallback
K2_finish:
    """)
    for i in range(8):
        a(f"v_pk_mul_f32 {vr(O+2*i,2)}, {vr(O+2*i,2)}, v[10:11] op_sel_hi:[1,0]")
    for i in range(8):
        a(f"v_cvt_pk_bf16_f32 v{T+i}, v{O+2*i}, v{O+2*i+1}")
    a(f"""
    s_lshl_b32 s38, s25, 2
    s_add_u32 s38, s38, s26
    s_lshl_b32 s38, s38, 4
    s_add_u32 s38, s38, s24
    s_lshl_b32 s38, s38, 11
    s_add_u32 s38, s38, {WS_O}
    s_mov_b32 exec_lo, 0
    v_mov_b32 v{T+6}, 0
    v_mov_b32 v{T+7}, 0
    s_mov_b32 exec_lo, -1
    buffer_store_dwordx4 {vr(T,4)}, v3, s[16:19], s38 offen
    buffer_store_dwordx4 {vr(T+4,4)}, v3, s[16:19], s38 offen offset:1024
K2_end:
    s_endpgm
    """)
    Q3 = Q + 24
    a(f"""
K2_fallback:
    s_mov_b32 exec_lo, 0
    v_mov_b32 v{Q3+6}, 0
    s_mov_b32 exec_lo, -1
    s_lshl_b32 s35, s24, 18
    s_add_u32 s35, s35, {WS_KV}
    s_mov_b32 s34, s35
    s_mov_b32 s40, 64
    v_mov_b32 v12, 0xff800000
K2_fb1:
    """)
    kvload(0, 0); kvload(0, 1)
    a("s_waitcnt vmcnt(0)")
    QKa(0, 0, 3); QKb(0, 0, 3)
    a("s_nop 15")
    for i in range(8):
        a(f"v_max3_f32 v12, v12, v{S+2*i}, v{S+2*i+1}")
    a(f"""
    s_add_u32 s34, s34, 4096
    s_sub_u32 s40, s40, 1
    s_cmp_lg_u32 s40, 0
    s_cbranch_scc1 K2_fb1
    v_mov_b32 v13, v12
    s_nop 1
    v_permlane32_swap_b32 v12, v13
    s_nop 1
    v_max_f32 v12, v12, v13
    s_mov_b32 s34, s35
    s_mov_b32 s40, 64
    """)
    for i in range(16):
        a(f"v_mov_b32 v{O+i}, 0")
    a("K2_fb2:")
    for p in range(4):
        kvload(0, p)
    a("s_waitcnt vmcnt(0)")
    QKa(0, 0, 3); QKb(0, 0, 3)
    a("s_nop 15")
    for i in range(16):
        a(f"v_sub_f32 v{S+i}, v{S+i}, v12")
    EX(0, 0, 16)
    a("s_nop 1")
    PVa(0, 0, 0); PVb(0, 0, 0)
    a(f"""
    s_add_u32 s34, s34, 4096
    s_sub_u32 s40, s40, 1
    s_cmp_lg_u32 s40, 0
    s_cbranch_scc1 K2_fb2
    s_nop 15
    v_mov_b32 v8, v{O+12}
    v_mov_b32 v9, v{O+12}
    s_nop 1
    v_permlane32_swap_b32 v8, v9
    s_nop 1
    v_rcp_f32 v10, v9
    s_nop 0
    s_branch K2_finish
    """)
    gen_moe(a)
    return 240


def gen_moe(a):
    XS = 16
    WD = 48
    G, U = 80, 96
    F = 112
    PART = 57344
    HB = 57344 + 4096
    a(f"""
K2_moe:
    s_load_dwordx2 s[4:5], s[0:1], 0
    s_load_dwordx4 s[44:47], s[0:1], 40
    s_load_dwordx2 s[48:49], s[0:1], 56
    s_sub_u32 s24, s2, 256
    v_and_b32 v5, 31, v1
    v_lshrrev_b32 v6, 5, v1
    v_and_b32 v8, 3, v1
    v_lshrrev_b32 v7, 2, v1
    v_mul_u32_u24 v7, 3584, v7
    v_lshl_add_u32 v7, v8, 4, v7
    s_lshl_b32 s34, s24, 6
    v_add_u32 v7, s34, v7
    v_lshlrev_b32 v9, 3, v1
    s_waitcnt lgkmcnt(0)
    """)
    srd(a, 16, 32, 33, WS_SIZE)
    srd(a, 8, 4, 5, 2048 * 896)
    srd(a, 12, 44, 45, 448 * 3584)
    srd(a, 20, 46, 47, 448 * 3584)
    srd(a, 28, 48, 49, 1792 * 896)
    a(f"""
    s_mov_b32 s34, {WS_CAND}
    buffer_load_dwordx2 v[10:11], v9, s[16:19], s34 offen
    s_mul_i32 s36, s26, {7*16*3584}
    s_mul_i32 s37, s26, 14336
    """)
    for s in range(7):
        a(f"""
        s_add_u32 m0, s37, {s*2048}
        s_add_u32 s38, s36, {s*16*3584}
        buffer_load_dwordx4 v7, s[12:15], s38 offen lds
        s_add_u32 m0, s37, {s*2048+1024}
        s_nop 0
        buffer_load_dwordx4 v7, s[20:23], s38 offen lds
        """)
    a(f"""
    v_lshrrev_b32 v12, 4, v1
    v_mul_u32_u24 v12, 896, v12
    v_and_b32 v13, 15, v1
    v_lshl_add_u32 v12, v13, 4, v12
    s_mul_i32 s38, s24, {32*896}
    s_lshl_b32 s39, s26, 8
    s_add_u32 s38, s38, s39
    """)
    for i in range(8):
        a(f"buffer_load_dwordx4 {vr(WD+4*i,4)}, v12, s[28:31], s38 offen")
        if i < 7:
            a("s_add_u32 s38, s38, 3584")
    a(f"""
    s_waitcnt vmcnt(22)
    s_mov_b32 s40, 0
    s_mov_b32 s41, 0x80000000
K2_bis:
    s_or_b32 s42, s40, s41
    v_cmp_le_u32 s[50:51], s42, v10
    v_cmp_le_u32 s[52:53], s42, v11
    s_lshr_b32 s41, s41, 1
    s_nop 1
    s_bcnt1_i32_b64 s43, s[50:51]
    s_bcnt1_i32_b64 s54, s[52:53]
    s_add_u32 s43, s43, s54
    s_cmp_ge_u32 s43, 8
    s_cselect_b32 s40, s42, s40
    s_cmp_eq_u32 s43, 8
    s_cbranch_scc1 K2_bisdone
    s_cmp_lg_u32 s41, 0
    s_cbranch_scc1 K2_bis
K2_bisdone:
    """)
    a(f"""
    s_bcnt1_i32_b64 s43, s[50:51]
    v_mbcnt_lo_u32_b32 v13, s50, 0
    v_mbcnt_hi_u32_b32 v13, s51, v13
    v_mbcnt_lo_u32_b32 v14, s52, 0
    v_mbcnt_hi_u32_b32 v14, s53, v14
    v_add_u32 v14, s43, v14
    s_lshl_b32 s38, s26, 5
    s_add_u32 s38, s38, {HB+512}
    v_and_b32 v13, 7, v13
    v_and_b32 v14, 7, v14
    v_lshl_add_u32 v13, v13, 2, s38
    v_lshl_add_u32 v14, v14, 2, s38
    s_mov_b64 exec, s[50:51]
    ds_write_b32 v13, v10
    s_mov_b64 exec, s[52:53]
    ds_write_b32 v14, v11
    s_mov_b64 exec, -1
    v_and_b32 v13, 7, v1
    v_lshl_add_u32 v14, v13, 2, s38
    ds_read_b32 v10, v14
    s_waitcnt lgkmcnt(0)
    v_and_b32 v11, 0x7ff, v10
    v_sub_u32 v11, 2047, v11
    v_mul_u32_u24 v11, 896, v11
    v_lshl_add_u32 v11, v6, 4, v11
    s_mul_i32 s38, s26, {7*32}
    """)
    for s in range(7):
        a(f"buffer_load_dwordx4 {vr(XS+4*s,4)}, v11, s[8:11], s38 offen offset:{32*s}")
    a(f"""
    s_add_u32 s38, s24, s26
    s_cmp_lg_u32 s38, 0
    s_cbranch_scc1 K2_nosel
    v_lshlrev_b32 v14, 2, v13
    s_mov_b32 s38, {WS_SEL}
    s_mov_b64 exec, 0xff
    buffer_store_dword v10, v14, s[16:19], s38 offen
    s_mov_b64 exec, -1
K2_nosel:
    v_bfe_u32 v2, v1, 2, 2
    v_lshlrev_b32 v15, 9, v6
    v_lshl_add_u32 v15, v2, 6, v15
    v_lshl_add_u32 v15, v8, 3, v15
    v_bfe_u32 v9, v1, 4, 1
    v_lshl_add_u32 v15, v9, 5, v15
    v_add_u32 v15, s37, v15
    s_waitcnt vmcnt(0)
    """)
    for s in range(7):
        b = F + 8 * (s % 2)
        a(f"""
        ds_read_b64_tr_b16 {vr(b,2)}, v15 offset:{s*2048}
        ds_read_b64_tr_b16 {vr(b+2,2)}, v15 offset:{s*2048+256}
        ds_read_b64_tr_b16 {vr(b+4,2)}, v15 offset:{s*2048+1024}
        ds_read_b64_tr_b16 {vr(b+6,2)}, v15 offset:{s*2048+1280}
        s_waitcnt lgkmcnt(0)
        {MF} {vr(G,16)}, {vr(b,4)}, {vr(XS+4*s,4)}, {"0" if s==0 else vr(G,16)}
        {MF} {vr(U,16)}, {vr(b+4,4)}, {vr(XS+4*s,4)}, {"0" if s==0 else vr(U,16)}
        """)
    a(f"""
    v_lshlrev_b32 v12, 4, v1
    v_add_u32 v12, s37, v12
    """)
    for i in range(8):
        a(f"ds_write_b128 v12, {vr(WD+4*i,4)} offset:{1024*i}")
    a(f"""
    v_lshlrev_b32 v13, 7, v5
    v_lshl_add_u32 v13, v6, 4, v13
    v_add_u32 v13, s37, v13
    s_mov_b32 exec_lo, 0xff
    s_mov_b32 exec_hi, 0xff
    s_nop 1
    """)
    for i in range(4):
        a(f"ds_write_b128 v13, {vr(G+4*i,4)} offset:{8192+32*i}")
        a(f"ds_write_b128 v13, {vr(U+4*i,4)} offset:{8192+1024+32*i}")
    a(f"""
    s_mov_b64 exec, -1
    v_lshlrev_b32 v13, 2, v0
    s_waitcnt lgkmcnt(0)
    s_barrier
    """)
    for w in range(4):
        a(f"ds_read_b32 v{16+w}, v13 offset:{w*14336+8192}")
        a(f"ds_read_b32 v{20+w}, v13 offset:{w*14336+8192+1024}")
    a(f"""
    v_lshlrev_b32 v14, 1, v0
    s_waitcnt lgkmcnt(0)
    v_add_f32 v16, v16, v17
    v_add_f32 v18, v18, v19
    v_add_f32 v20, v20, v21
    v_add_f32 v22, v22, v23
    v_add_f32 v16, v16, v18
    v_add_f32 v20, v20, v22
    v_cvt_pk_bf16_f32 v16, v16, v20
    v_and_b32 v20, 0xffff0000, v16
    v_lshlrev_b32 v16, 16, v16
    v_mul_f32 v17, {f32bits(-LOG2E):#x}, v16
    v_exp_f32 v17, v17
    s_nop 0
    v_add_f32 v17, 1.0, v17
    v_rcp_f32 v17, v17
    s_nop 0
    v_mul_f32 v16, v16, v17
    v_cvt_pk_bf16_f32 v16, v16, v16
    v_and_b32 v16, 0xffff0000, v16
    v_mul_f32 v16, v16, v20
    v_cvt_pk_bf16_f32 v16, v16, v16
    ds_write_b16 v14, v16 offset:{HB}
    v_and_b32 v13, 7, v1
    v_lshlrev_b32 v13, 6, v13
    v_lshl_add_u32 v13, v6, 4, v13
    v_lshlrev_b32 v15, 11, v6
    v_lshl_add_u32 v15, v2, 8, v15
    v_lshl_add_u32 v15, v8, 3, v15
    v_lshl_add_u32 v15, v9, 5, v15
    v_add_u32 v15, s37, v15
    s_waitcnt lgkmcnt(0)
    s_barrier
    ds_read_b128 v[16:19], v13 offset:{HB}
    ds_read_b128 v[20:23], v13 offset:{HB+32}
    """)
    FR = 24
    Y = 64
    for t in range(4):
        for s in range(2):
            b = FR + 8 * t + 4 * s
            a(f"ds_read_b64_tr_b16 {vr(b,2)}, v15 offset:{s*4096+64*t}")
            a(f"ds_read_b64_tr_b16 {vr(b+2,2)}, v15 offset:{s*4096+64*t+1024}")
        if t == 1:
            a("s_waitcnt lgkmcnt(0)")
    a(f"""
    v_mul_u32_u24 v13, 1792, v5
    v_lshl_add_u32 v13, v6, 4, v13
    s_mul_i32 s38, s24, 14336
    s_lshl_b32 s39, s26, 9
    s_add_u32 s38, s38, s39
    s_add_u32 s38, s38, {WS_Y}
    s_waitcnt lgkmcnt(0)
    """)
    for t in range(4):
        a(f"{MF} {vr(Y+16*t,16)}, {vr(FR+8*t,4)}, v[16:19], 0")
        a(f"{MF} {vr(Y+16*t,16)}, {vr(FR+8*t+4,4)}, v[20:23], {vr(Y+16*t,16)}")
    a(f"""
    s_mov_b32 exec_lo, 0xff
    s_mov_b32 exec_hi, 0xff
    s_nop 15
    """)
    for t in range(4):
        if t == 2:
            a("s_cmp_eq_u32 s26, 3\ns_cbranch_scc1 K2_moe_end")
        for i in range(4):
            a(f"buffer_store_dwordx4 {vr(Y+16*t+4*i,4)}, v13, s[16:19], s38 offen offset:{128*t+32*i}")
    a("K2_moe_end:\ns_endpgm")


K3_WREG = 29 * 1024
K3_OB = 4 * K3_WREG
K3_YB = K3_OB + 32768
K3_LDS = K3_YB + 4096


def gen_k3(a):
    head(a, "proj_kernel")
    ACC = 16
    XR = 32
    BX = 40
    FR = 64
    a(f"""
    s_cmp_ge_u32 s2, 256
    s_cbranch_scc1 K3_end
    s_load_dwordx2 s[4:5], s[0:1], 0
    s_load_dwordx2 s[6:7], s[0:1], 16
    s_load_dwordx2 s[30:31], s[0:1], 72
    s_load_dwordx2 s[32:33], s[0:1], 88
    v_lshrrev_b32 v2, 6, v0
    v_and_b32 v1, 63, v0
    s_and_b32 s24, s2, 7
    s_lshr_b32 s34, s2, 5
    v_readfirstlane_b32 s26, v2
    s_lshl_b32 s34, s34, 3
    s_add_u32 s24, s24, s34
    s_bfe_u32 s25, s2, 0x20003
    s_lshl_b32 s27, s25, 2
    s_add_u32 s27, s27, s26
    v_and_b32 v5, 31, v1
    v_lshrrev_b32 v6, 5, v1
    v_and_b32 v8, 3, v1
    v_lshlrev_b32 v3, 4, v1
    v_lshrrev_b32 v7, 2, v1
    v_mul_u32_u24 v7, 896, v7
    v_lshl_add_u32 v7, v8, 4, v7
    s_lshl_b32 s34, s27, 6
    v_add_u32 v7, s34, v7
    s_waitcnt lgkmcnt(0)
    s_add_u32 s34, s32, {WS_SEL}
    s_addc_u32 s35, s33, 0
    s_load_dwordx8 s[56:63], s[34:35], 0
    """)
    srd(a, 8, 4, 5, 2048 * 896)
    srd(a, 12, 6, 7, 448 * 896)
    srd(a, 16, 32, 33, WS_SIZE)
    srd(a, 20, 30, 31, 2048 * 896)
    a(f"""
    s_lshl_b32 s36, s24, 15
    s_lshl_b32 s37, s26, 13
    s_add_u32 s36, s36, s37
    s_add_u32 s36, s36, {WS_O}
    s_add_u32 m0, s37, {K3_OB}
    s_nop 0
    """)
    for i in range(8):
        if i == 4:
            a(f"s_add_u32 m0, s37, {K3_OB+4096}\ns_add_u32 s36, s36, 4096")
        a(f"buffer_load_dwordx4 v3, s[16:19], s36 offen offset:{1024*(i%4)} lds")
    a(f"""
    s_mul_i32 s37, s26, {K3_WREG}
    s_lshl_b32 s38, s24, 5
    v_add_u32 v9, s38, v5
    v_mul_u32_u24 v4, 896, v9
    v_lshl_add_u32 v4, v6, 3, v4
    s_lshl_b32 s38, s27, 6
    v_add_u32 v4, s38, v4
    v_lshlrev_b32 v9, 2, v9
    s_cmp_ge_u32 s27, 14
    s_cbranch_scc1 K3_skipw
    """)
    for i in range(29):
        a(f"""
        s_add_u32 m0, s37, {1024*i}
        s_mov_b32 s38, {i*16*896}
        buffer_load_dwordx4 v7, s[12:15], s38 offen lds
        """)
    a(f"""
    s_mov_b32 s38, {WS_G}
    buffer_load_dword v10, v9, s[16:19], s38 offen
    """)
    for i in range(4):
        a(f"buffer_load_dwordx2 {vr(XR+2*i,2)}, v4, s[8:11], 0 offen offset:{16*i}")
    a(f"""
K3_skipw:
    v_bfe_u32 v2, v1, 2, 2
    v_lshlrev_b32 v15, 8, v6
    v_lshl_add_u32 v15, v2, 6, v15
    v_lshl_add_u32 v15, v8, 3, v15
    v_bfe_u32 v9, v1, 4, 1
    v_lshl_add_u32 v15, v9, 5, v15
    v_add_u32 v15, s37, v15
    v_add_u32 v14, {K3_OB}, v3
    s_waitcnt vmcnt(0) lgkmcnt(0)
    """)
    for i in range(8):
        a(f"v_lshlrev_b32 v{BX+2*i}, 16, v{XR+i}")
        a(f"v_and_b32 v{BX+2*i+1}, 0xffff0000, v{XR+i}")
    a(f"""
    s_mov_b32 s40, 0
K3_sel:
    s_mov_b32 m0, s40
    s_nop 0
    s_movrels_b32 s41, s56
    s_and_b32 s42, s41, 0x7ff
    s_sub_u32 s42, 2047, s42
    s_lshr_b32 s43, s42, 5
    s_cmp_lg_u32 s43, s24
    s_cbranch_scc1 K3_selnext
    v_lshrrev_b32 v11, 5, v0
    v_mul_u32_u24 v11, 14336, v11
    v_and_b32 v12, 31, v0
    v_lshl_add_u32 v11, v12, 4, v11
    s_mul_i32 s44, s40, 1792
    s_lshl_b32 s45, s25, 9
    s_add_u32 s44, s44, s45
    s_add_u32 s44, s44, {WS_Y}
    """)
    for i in range(7):
        a(f"buffer_load_dwordx4 {vr(FR+4*i,4)}, v11, s[16:19], s44 offen")
        if i < 6:
            a(f"s_add_u32 s44, s44, {8*14336}")
    a(f"""
    v_lshlrev_b32 v11, 4, v0
    v_add_u32 v11, {K3_YB}, v11
    s_waitcnt vmcnt(0)
    """)
    for i in range(1, 7):
        a(f"v_pk_add_f32 {vr(FR,2)}, {vr(FR,2)}, {vr(FR+4*i,2)}")
        a(f"v_pk_add_f32 {vr(FR+2,2)}, {vr(FR+2,2)}, {vr(FR+4*i+2,2)}")
    a(f"""
    s_barrier
    ds_write_b128 v11, {vr(FR,4)}
    s_lshl_b32 s44, s26, 7
    s_add_u32 s44, s44, {K3_YB}
    v_lshl_add_u32 v11, v6, 4, s44
    s_lshr_b32 s45, s41, 16
    s_and_b32 s46, s45, 0x8000
    s_cmp_lg_u32 s46, 0
    s_cselect_b32 s46, s46, 0xffff
    s_xor_b32 s45, s45, s46
    s_lshl_b32 s45, s45, 16
    v_mov_b32 v12, s45
    v_mul_f32 v12, {f32bits(-LOG2E):#x}, v12
    v_exp_f32 v12, v12
    s_and_b32 s42, s42, 31
    v_add_f32 v12, 1.0, v12
    v_rcp_f32 v12, v12
    v_cmp_eq_u32 vcc, s42, v5
    v_cvt_pk_bf16_f32 v12, v12, v12
    v_and_b32 v12, 0xffff0000, v12
    s_waitcnt lgkmcnt(0)
    s_barrier
    s_mov_b64 exec, vcc
    """)
    for i in range(4):
        for p in range(8):
            a(f"ds_read_b128 {vr(FR+4*p,4)}, v11 offset:{512*p+32*i}")
        a("s_waitcnt lgkmcnt(0)")
        for p in range(1, 8):
            a(f"v_pk_add_f32 {vr(FR,2)}, {vr(FR,2)}, {vr(FR+4*p,2)}")
            a(f"v_pk_add_f32 {vr(FR+2,2)}, {vr(FR+2,2)}, {vr(FR+4*p+2,2)}")
        for j in range(4):
            r = FR + j
            a(f"""
            v_cvt_pk_bf16_f32 v{r}, v{r}, v{r}
            v_and_b32 v{r}, 0xffff0000, v{r}
            v_mul_f32 v{r}, v{r}, v12
            v_cvt_pk_bf16_f32 v{r}, v{r}, v{r}
            v_and_b32 v{r}, 0xffff0000, v{r}
            v_add_f32 v{r}, v{r}, v{BX+4*i+j}
            v_cvt_pk_bf16_f32 v{r}, v{r}, v{r}
            v_and_b32 v{BX+4*i+j}, 0xffff0000, v{r}
            """)
    a(f"""
    s_mov_b64 exec, -1
K3_selnext:
    s_add_u32 s40, s40, 1
    s_cmp_lt_u32 s40, 8
    s_cbranch_scc1 K3_sel
    s_barrier
    s_cmp_ge_u32 s27, 14
    s_cbranch_scc1 K3_end
    """)
    D = 4
    def reads(ks):
        b = FR + 8 * (ks % (D + 1))
        h, s = ks // 2, ks % 2
        o = (28 * h + 16 * s) * 64
        a(f"""
        ds_read_b128 {vr(b,4)}, v14 offset:{1024*ks}
        ds_read_b64_tr_b16 {vr(b+4,2)}, v15 offset:{o}
        ds_read_b64_tr_b16 {vr(b+6,2)}, v15 offset:{o+512}
        """)
    for ks in range(D):
        reads(ks)
    a(f"""
    v_cvt_pk_bf16_f32 v10, v10, v10
    v_and_b32 v10, 0xffff0000, v10
    v_mul_f32 v10, {f32bits(-LOG2E):#x}, v10
    v_exp_f32 v10, v10
    s_nop 0
    v_add_f32 v10, 1.0, v10
    v_rcp_f32 v10, v10
    s_nop 0
    v_cvt_pk_bf16_f32 v10, v10, v10
    v_and_b32 v10, 0xffff0000, v10
    v_sub_f32 v12, 1.0, v10
    v_cvt_pk_bf16_f32 v12, v12, v12
    v_and_b32 v12, 0xffff0000, v12
    """)
    for ks in range(32):
        if ks + D < 32:
            reads(ks + D)
        n = min(D, 31 - ks) * 3
        b = FR + 8 * (ks % (D + 1))
        a(f"s_waitcnt lgkmcnt({n})")
        a(f"{MF} {vr(ACC,16)}, {vr(b+4,4)}, {vr(b,4)}, {'0' if ks==0 else vr(ACC,16)}")
        if 8 <= ks < 16:
            i = ks - 8
            a(f"""
            v_pk_mul_f32 {vr(BX+2*i,2)}, {vr(BX+2*i,2)}, v[12:13] op_sel_hi:[1,0]
            v_cvt_pk_bf16_f32 v{BX+2*i}, v{BX+2*i}, v{BX+2*i+1}
            v_and_b32 v{BX+2*i+1}, 0xffff0000, v{BX+2*i}
            v_lshlrev_b32 v{BX+2*i}, 16, v{BX+2*i}
            """)
    a("s_nop 15")
    for i in range(8):
        r = ACC + 2 * i
        a(f"""
        v_cvt_pk_bf16_f32 v{r}, v{r}, v{r+1}
        v_and_b32 v{r+1}, 0xffff0000, v{r}
        v_lshlrev_b32 v{r}, 16, v{r}
        v_pk_mul_f32 {vr(r,2)}, {vr(r,2)}, v[10:11] op_sel_hi:[1,0]
        v_cvt_pk_bf16_f32 v{r}, v{r}, v{r+1}
        v_and_b32 v{r+1}, 0xffff0000, v{r}
        v_lshlrev_b32 v{r}, 16, v{r}
        v_pk_add_f32 {vr(r,2)}, {vr(r,2)}, {vr(BX+2*i,2)}
        v_cvt_pk_bf16_f32 v{XR+i}, v{r}, v{r+1}
        """)
        if i % 2 == 1:
            a(f"buffer_store_dwordx2 {vr(XR+i-1,2)}, v4, s[20:23], 0 offen offset:{16*(i//2)}")
    a("K3_end:\ns_endpgm")
    return 112


def main(path):
    a = A()
    hdr = f"""; generated by gen1.py
; @launch kernel=qkv_kernel grid=(256,1,1) block=(256,1,1) lds={K1_LDS}
; @launch kernel=attn_kernel grid=({256+NMOE},1,1) block=(256,1,1) lds={K2_LDS}
; @launch kernel=proj_kernel grid=(256,1,1) block=(256,1,1) lds={K3_LDS}
.amdgcn_target "amdgcn-amd-amdhsa--gfx950"
.text
"""
    v1 = gen_k1_full(a)
    v2 = gen_k2(a)
    v3 = gen_k3(a)
    txt = hdr + a.text() + '.section .rodata,"a"\n' + kd("qkv_kernel", v1) + kd("attn_kernel", v2) + kd("proj_kernel", v3)
    open(path, "w").write(txt)


if __name__ == "__main__":
    main(sys.argv[1] if len(sys.argv) > 1 else f"cdna_kernels/{NAME}.s")
```

```python
import sys, math, struct

NAME = "gated_mix__softmax_full_mha__moe_arch_mod__prompt"

WS_Q = 0
WS_KV = 0x200000
WS_O = 0x600000
WS_G = 0x800000
WS_CAND = 0x802000
WS_SEL = 0x803000
WS_Y = 0x810000
WS_SIZE = 0xA40000
NMOE = 56

def f32bits(x):
    return struct.unpack("<I", struct.pack("<f", x))[0]

LOG2E = 1.4426950408889634
QSCALE = (28 ** -0.5) * LOG2E


class A:
    def __init__(self):
        self.l = []
    def __call__(self, s):
        for line in s.strip("\n").split("\n"):
            line = line.strip()
            if not line:
                continue
            if line.endswith(":") or line.startswith("."):
                self.l.append(line)
            else:
                self.l.append("    " + line)
    def text(self):
        return "\n".join(self.l) + "\n"


def vr(b, n):
    return f"v[{b}:{b+n-1}]"


def srd(a, d, lo, hi, size):
    a(f"""
    s_mov_b32 s{d}, s{lo}
    s_and_b32 s{d+1}, s{hi}, 0xffff
    s_mov_b32 s{d+2}, {size:#x}
    s_mov_b32 s{d+3}, 0x20000
    """)


def kd(name, vgpr, sgpr=96):
    v4 = (vgpr + 3) // 4 * 4
    return f""".p2align 6
.amdhsa_kernel {name}
  .amdhsa_next_free_vgpr {vgpr}
  .amdhsa_next_free_sgpr {sgpr}
  .amdhsa_accum_offset {v4}
  .amdhsa_group_segment_fixed_size 0
  .amdhsa_kernarg_size 96
  .amdhsa_user_sgpr_count 2
  .amdhsa_user_sgpr_kernarg_segment_ptr 1
  .amdhsa_system_sgpr_workgroup_id_x 1
.end_amdhsa_kernel
"""


def head(a, name):
    a(f""".globl {name}
.p2align 8
.type {name},@function
{name}:""")


STAMPS = "--stamps" in sys.argv
WS_STAMP = 0x8f0000
def stamp(a, i):
    if STAMPS:
        op = "s_memtime" if "--cyc" in sys.argv else "s_memrealtime"
        a(f"{op} s[{64+2*i}:{65+2*i}]\ns_waitcnt lgkmcnt(0)")
def stamp_out(a, kern, n):
    if not STAMPS:
        return
    stamp(a, n)
    a(f"""
    s_mov_b64 exec, 1
    s_lshl_b32 s90, s2, 2
    s_add_u32 s90, s90, s26
    s_lshl_b32 s90, s90, 5
    s_add_u32 s90, s90, {WS_STAMP + 0x100000 + kern*0x10000}
    v_mov_b32 v0, 0
    """)
    for i in range(n + 1):
        a(f"v_mov_b32 v1, s{64+2*i}\nbuffer_store_dword v1, v0, s[16:19], s90 offen offset:{4*i}")

MF = "v_mfma_f32_32x32x16_bf16"
SM = "v_smfmac_f32_32x32x32_bf16"
HI = "0xffffffff00000000"

KSTR = 3392
K1_KEYS = 28 * KSTR
K1_LDS = K1_KEYS + 512


def gen_k1(a):
    head(a, "qkv_kernel")
    X = 16
    WF = 128
    AQ, AK, AV = 152, 168, 184
    a(f"""
    s_cmp_ge_u32 s2, 256
    s_cbranch_scc1 K1_end
    """)
    stamp(a, 0)
    a(f"""
    s_load_dwordx4 s[4:7], s[0:1], 0
    s_load_dwordx2 s[28:29], s[0:1], 32
    s_load_dwordx2 s[30:31], s[0:1], 64
    s_load_dwordx2 s[32:33], s[0:1], 88
    v_lshrrev_b32 v2, 6, v0
    v_and_b32 v1, 63, v0
    s_and_b32 s34, s2, 7
    s_lshr_b32 s35, s2, 3
    v_readfirstlane_b32 s26, v2
    s_and_b32 s24, s34, 1
    s_lshl_b32 s24, s24, 3
    s_and_b32 s36, s35, 7
    s_add_u32 s24, s24, s36
    s_lshr_b32 s25, s34, 1
    s_lshl_b32 s25, s25, 2
    s_lshr_b32 s36, s35, 3
    s_add_u32 s25, s25, s36
    s_lshl_b32 s27, s25, 2
    s_add_u32 s27, s27, s26
    """)
    a(f"""
    v_and_b32 v5, 31, v1
    s_lshl_b32 s36, s27, 5
    v_add_u32 v3, s36, v5
    v_mul_u32_u24 v4, 896, v3
    v_lshrrev_b32 v6, 5, v1
    v_lshl_add_u32 v4, v6, 4, v4
    v_lshrrev_b32 v7, 2, v1
    v_mul_u32_u24 v7, 2688, v7
    v_and_b32 v8, 3, v1
    v_lshl_add_u32 v7, v8, 4, v7
    s_mul_i32 s36, s24, 56
    v_add_u32 v7, s36, v7
    v_lshlrev_b32 v9, 1, v0
    s_waitcnt lgkmcnt(0)
    """)
    srd(a, 8, 4, 5, 2048 * 896)
    srd(a, 12, 6, 7, 448 * 2688)
    srd(a, 16, 32, 33, WS_SIZE)
    srd(a, 20, 28, 29, 896)
    srd(a, 28, 30, 31, 896)
    return X, WF, AQ, AK, AV


def gen_k1_full(a):
    X, WF, AQ, AK, AV = gen_k1(a)
    a(f"""
    buffer_load_ushort v10, v9, s[20:23], 0 offen
    buffer_load_ushort v11, v9, s[28:31], 0 offen
    buffer_load_ushort v12, v9, s[20:23], 0 offen offset:512
    buffer_load_ushort v13, v9, s[28:31], 0 offen offset:512
    s_mul_i32 s36, s26, {16*2688}
    s_mul_i32 s37, s26, {KSTR}
    """)
    for g in range(7):
        for seg in range(3):
            a(f"""
            s_add_u32 m0, s37, {g*4*KSTR + seg*1024}
            s_add_u32 s38, s36, {g*4*16*2688 + seg*896}
            buffer_load_dwordx4 v7, s[12:15], s38 offen lds
            """)
        for s in range(4 * g, 4 * g + 4):
            a(f"buffer_load_dwordx4 {vr(X+4*s,4)}, v4, s[8:11], 0 offen offset:{32*s}")
    stamp(a, 1)
    a(f"""
    v_lshrrev_b32 v14, 4, v0
    v_mul_u32_u24 v14, {KSTR}, v14
    v_bfe_u32 v2, v0, 2, 1
    v_lshl_add_u32 v14, v2, 8, v14
    v_bfe_u32 v2, v0, 3, 1
    v_lshl_add_u32 v14, v2, 5, v14
    v_lshl_add_u32 v14, v8, 3, v14
    v_bfe_u32 v2, v1, 2, 2
    v_lshlrev_b32 v15, 9, v6
    v_lshl_add_u32 v15, v2, 6, v15
    v_lshl_add_u32 v15, v8, 3, v15
    v_bfe_u32 v9, v1, 4, 1
    v_lshl_add_u32 v15, v9, 5, v15
    v_lshlrev_b32 v2, 3, v2
    v_lshl_add_u32 v2, v6, 5, v2
    v_add_u32 v2, 3072, v2
    v_and_b32 v9, 19, v1
    v_cmp_eq_u32 vcc, 19, v9
    s_nop 1
    v_cndmask_b32 v2, v15, v2, vcc
    s_waitcnt vmcnt(49)
    v_lshl_or_b32 v10, v11, 16, v10
    v_lshl_or_b32 v12, v13, 16, v12
    ds_write_b32 v14, v10 offset:3072
    s_cmp_eq_u32 s26, 3
    s_cbranch_scc1 K1_notab
    ds_write_b32 v14, v12 offset:{3072 + 16*KSTR}
K1_notab:
    s_waitcnt lgkmcnt(0)
    """)

    def reads(s):
        b = WF + 12 * (s % 2)
        if s % 4 == 0:
            g = s // 4
            a(f"s_waitcnt vmcnt({7*(6-g)})\ns_barrier")
            if g == 0: stamp(a, 2)
            if g == 3: stamp(a, 3)
            if g == 6: stamp(a, 4)
        if s == 14:
            a(f"v_add_u32 v2, {14*KSTR}, v2\nv_add_u32 v15, {14*KSTR}, v15")
        o = (s % 14) * KSTR
        a(f"""
        ds_read_b64_tr_b16 {vr(b+4,2)}, v15 offset:{o+1024}
        ds_read_b64_tr_b16 {vr(b+6,2)}, v15 offset:{o+1024+256}
        ds_read_b64_tr_b16 {vr(b+8,2)}, v15 offset:{o+2048}
        ds_read_b64_tr_b16 {vr(b+10,2)}, v15 offset:{o+2048+256}
        ds_read_b64_tr_b16 {vr(b,2)}, v2 offset:{o}
        ds_read_b64_tr_b16 {vr(b+2,2)}, v2 offset:{o+256}
        """)

    reads(0)
    for s in range(28):
        if s + 1 < 28:
            reads(s + 1)
            a("s_waitcnt lgkmcnt(6)")
        else:
            a("s_waitcnt lgkmcnt(0)")
        b = WF + 12 * (s % 2)
        x = vr(X + 4 * s, 4)
        c = lambda r: "0" if s == 0 else vr(r, 16)
        a(f"""
        {MF} {vr(AK,16)}, {vr(b+4,4)}, {x}, {c(AK)}
        {MF} {vr(AV,16)}, {x}, {vr(b+8,4)}, {c(AV)}
        {MF} {vr(AQ,16)}, {vr(b,4)}, {x}, {c(AQ)}
        """)
    stamp(a, 5)
    PK, PV, PQ, SD = 16, 24, 32, 48
    a(f"""
    s_lshl_b32 s36, s24, 6
    s_add_u32 s36, s36, s27
    s_lshl_b32 s37, s36, 12
    s_add_u32 s37, s37, {WS_KV}
    s_lshl_b32 s36, s36, 11
    v_lshlrev_b32 v9, 4, v1
    v_and_b32 v10, 0x33, v1
    v_bfe_u32 v11, v1, 2, 1
    v_lshl_or_b32 v10, v11, 3, v10
    v_bfe_u32 v11, v1, 3, 1
    v_lshl_or_b32 v10, v11, 2, v10
    v_lshlrev_b32 v10, 4, v10
    v_cmp_eq_u32 vcc, 28, v5
    v_mov_b32 v11, 0x3f803f80
    s_mov_b32 s40, {f32bits(QSCALE):#x}
    v_cndmask_b32 v11, 0, v11, vcc
    s_mov_b32 s41, s40
    """)
    for i in range(8):
        a(f"v_cvt_pk_bf16_f32 v{PK+i}, v{AK+2*i}, v{AK+2*i+1}")
    for i in range(8):
        a(f"v_cvt_pk_bf16_f32 v{PV+i}, v{AV+2*i}, v{AV+2*i+1}")
    a(f"""
    s_mov_b32 exec_lo, 0xf0000000
    s_mov_b32 exec_hi, 0xf0000000
    """)
    for i in range(8):
        a(f"v_mov_b32 v{PV+i}, v11")
    a(f"""
    s_mov_b32 exec_lo, 0
    s_mov_b32 exec_hi, -1
    v_mov_b32 v{PK+6}, 0x3f80
    v_mov_b32 v{PK+7}, 0
    v_cvt_pk_bf16_f32 v12, v{AQ+12}, v{AQ+12}
    v_sub_u32 v13, 2047, v3
    v_ashrrev_i32 v14, 31, v12
    v_or_b32 v14, 0x80000000, v14
    v_xor_b32 v12, v12, v14
    v_and_b32 v12, 0xffff0000, v12
    v_or_b32 v12, v12, v13
    s_lshl_b32 s38, s26, 7
    v_lshl_add_u32 v13, v5, 2, s38
    v_add_u32 v13, {K1_KEYS}, v13
    ds_write_b32 v13, v12
    s_cmp_lg_u32 s24, 0
    s_cbranch_scc1 K1_nog
    v_lshlrev_b32 v13, 2, v3
    s_mov_b32 s38, {WS_G}
    buffer_store_dword v{AQ+13}, v13, s[16:19], s38 offen
K1_nog:
    s_mov_b64 exec, -1
    buffer_store_dwordx4 {vr(PK,4)}, v10, s[16:19], s37 offen
    buffer_store_dwordx4 {vr(PK+4,4)}, v10, s[16:19], s37 offen offset:1024
    buffer_store_dwordx4 {vr(PV,4)}, v9, s[16:19], s37 offen offset:2048
    buffer_store_dwordx4 {vr(PV+4,4)}, v9, s[16:19], s37 offen offset:3072
    """)
    T = 64
    for i in range(8):
        a(f"v_pk_mul_f32 {vr(T+2*i,2)}, {vr(AQ+2*i,2)}, s[40:41]")
    for i in range(8):
        a(f"v_cvt_pk_bf16_f32 v{PQ+i}, v{T+2*i}, v{T+2*i+1}")
    a(f"""
    s_mov_b32 exec_lo, 0
    v_mov_b32 v{PQ+6}, 0
    v_mov_b32 v{PQ+7}, 0
    s_mov_b32 exec_lo, -1
    s_nop 1
    {MF} {vr(SD,16)}, {vr(PK,4)}, {vr(PQ,4)}, 0
    {MF} {vr(SD,16)}, {vr(PK+4,4)}, {vr(PQ+4,4)}, {vr(SD,16)}
    s_waitcnt lgkmcnt(0)
    s_barrier
    """)
    a(f"""
    s_lshl_b32 s38, s24, 3
    s_lshl_b32 s39, s26, 1
    s_add_u32 s38, s38, s39
    s_lshl_b32 s38, s38, 2
    s_add_u32 s38, s38, {K1_KEYS}
    v_lshl_add_u32 v12, v6, 2, s38
    v_lshlrev_b32 v13, 4, v5
    v_add_u32 v13, {K1_KEYS}, v13
    ds_read_b32 v14, v12
    ds_read_b128 v[80:83], v13
    s_nop 3
    v_max3_f32 v84, v{SD}, v{SD+1}, v{SD+2}
    v_max3_f32 v85, v{SD+3}, v{SD+4}, v{SD+5}
    v_max3_f32 v86, v{SD+6}, v{SD+7}, v{SD+8}
    v_max3_f32 v87, v{SD+9}, v{SD+10}, v{SD+11}
    v_max3_f32 v88, v{SD+12}, v{SD+13}, v{SD+14}
    v_max3_f32 v84, v84, v85, v{SD+15}
    v_max3_f32 v86, v86, v87, v88
    v_max_f32 v84, v84, v86
    v_mov_b32 v85, v84
    s_nop 1
    v_permlane32_swap_b32 v84, v85
    s_nop 1
    v_max_f32 v84, v84, v85
    s_mov_b32 exec_lo, 0
    v_cvt_pk_bf16_f32 v{PQ+6}, -v84, 0
    s_mov_b32 exec_lo, -1
    buffer_store_dwordx4 {vr(PQ,4)}, v9, s[16:19], s36 offen
    buffer_store_dwordx4 {vr(PQ+4,4)}, v9, s[16:19], s36 offen offset:1024
    s_waitcnt lgkmcnt(0)
    v_cmp_gt_u32 s[42:43], v80, v14
    v_cmp_gt_u32 s[44:45], v81, v14
    v_cmp_gt_u32 s[46:47], v82, v14
    v_cmp_gt_u32 s[48:49], v83, v14
    s_nop 3
    s_bcnt1_i32_b32 s42, s42
    s_bcnt1_i32_b32 s43, s43
    s_bcnt1_i32_b32 s44, s44
    s_bcnt1_i32_b32 s45, s45
    s_bcnt1_i32_b32 s46, s46
    s_bcnt1_i32_b32 s47, s47
    s_bcnt1_i32_b32 s48, s48
    s_bcnt1_i32_b32 s49, s49
    s_add_u32 s42, s42, s44
    s_add_u32 s46, s46, s48
    s_add_u32 s42, s42, s46
    s_add_u32 s43, s43, s45
    s_add_u32 s47, s47, s49
    s_add_u32 s43, s43, s47
    v_mov_b32 v12, s42
    s_mov_b32 exec_lo, 0
    v_mov_b32 v12, s43
    s_mov_b32 exec_lo, 1
    s_mov_b32 exec_hi, 1
    v_cmp_gt_u32 vcc, 8, v12
    s_lshl_b32 s38, s25, 5
    s_add_u32 s38, s38, {WS_CAND}
    v_lshlrev_b32 v12, 2, v12
    s_and_b64 exec, exec, vcc
    s_cbranch_execz K1_end0
    buffer_store_dword v14, v12, s[16:19], s38 offen
K1_end0:
    """)
    stamp(a, 6)
    if STAMPS: a("s_waitcnt vmcnt(0)")
    stamp_out(a, 0, 7)
    a(f"""
K1_end:
    s_endpgm
    """)
    return 200


K2_LDS = 57344 + 4096 + 1024


def gen_k2(a):
    head(a, "attn_kernel")
    Q, O, S, KV = 16, 48, 112, 176
    NB = 4
    a(f"""
    s_cmp_ge_u32 s2, {256+NMOE}
    s_cbranch_scc1 K2_end
    """)
    stamp(a, 0)
    a(f"""
    s_load_dwordx2 s[32:33], s[0:1], 88
    v_lshrrev_b32 v2, 6, v0
    v_and_b32 v1, 63, v0
    s_cmp_ge_u32 s2, 256
    v_readfirstlane_b32 s26, v2
    s_cbranch_scc1 K2_moe
    s_and_b32 s24, s2, 7
    s_lshl_b32 s24, s24, 1
    s_bfe_u32 s34, s2, 0x10003
    s_add_u32 s24, s24, s34
    s_lshr_b32 s25, s2, 4
    v_lshlrev_b32 v3, 4, v1
    s_lshl_b32 s34, s24, 18
    s_lshl_b32 s35, s26, 16
    s_add_u32 s34, s34, s35
    s_add_u32 s34, s34, {WS_KV}
    s_lshl_b32 s36, s24, 6
    s_lshl_b32 s37, s25, 2
    s_add_u32 s36, s36, s37
    s_waitcnt lgkmcnt(0)
    """)
    srd(a, 16, 32, 33, WS_SIZE)

    def kvload(buf, part):
        a(f"buffer_load_dwordx4 {vr(KV+16*buf+4*part,4)}, v3, s[16:19], s34 offen offset:{1024*part}")

    def qload(i):
        a(f"""
        s_add_u32 s38, s26, {i+1}
        s_and_b32 s38, s38, 3
        s_add_u32 s38, s38, s36
        s_lshl_b32 s38, s38, 11
        buffer_load_dwordx4 {vr(Q+8*i,4)}, v3, s[16:19], s38 offen
        buffer_load_dwordx4 {vr(Q+8*i+4,4)}, v3, s[16:19], s38 offen offset:1024
        """)
    qload(0)
    kvload(0, 0); kvload(0, 1)
    qload(1); qload(2); qload(3)
    kvload(0, 2); kvload(0, 3)
    for b in (1, 2):
        a("s_add_u32 s34, s34, 4096")
        for p in range(4):
            kvload(b, p)
    a("v_mov_b32 v2, 0xdddddddd")
    for i in range(64):
        a(f"v_mov_b32 v{O+i}, 0")
    for i in range(3):
        a(f"""
        s_add_u32 s38, s26, {i+1}
        s_and_b32 s38, s38, 3
        s_mul_i32 s38, s38, 12288
        s_add_u32 s38, s38, {(2-i)*4096}
        v_add_u32 v{4+i}, s38, v3
        """)
    a(f"""
    s_mul_i32 s38, s26, 12288
    v_add_u32 v7, s38, v3
    s_mov_b32 s40, 3
    """)

    def QKa(sb, buf, q):
        a(f"{MF} {vr(S+16*sb,16)}, {vr(KV+16*buf,4)}, {vr(Q+8*q,4)}, 0")
    def QKb(sb, buf, q):
        a(f"{MF} {vr(S+16*sb,16)}, {vr(KV+16*buf+4,4)}, {vr(Q+8*q+4,4)}, {vr(S+16*sb,16)}")
    def PVa(sb, buf, q):
        a(f"{SM} {vr(O+16*q,16)}, {vr(KV+16*buf+8,4)}, {vr(S+16*sb,8)}, v2")
    def PVb(sb, buf, q):
        a(f"{SM} {vr(O+16*q,16)}, {vr(KV+16*buf+12,4)}, {vr(S+16*sb+8,8)}, v2")
    def EX(sb, lo, hi):
        for i in range(lo, hi):
            a(f"v_exp_f32 v{S+16*sb+i}, v{S+16*sb+i}")

    for i in range(16):
        a(f"v_mov_b32 v{S+48+i}, 0")
    for i in range(8):
        a(f"v_mov_b32 v{KV+48+8+i}, 0")
    stamp(a, 1)
    a("s_waitcnt vmcnt(16)")
    stamp(a, 2)
    QKa(0, 0, 0); QKb(0, 0, 0)
    a("s_waitcnt vmcnt(10)\ns_nop 9")

    def slot(u, cur, nxt, prv, extra):
        sb = u % 4
        def ex(p):
            if p in extra:
                extra[p]()
        ex("pre")
        if nxt:
            QKa((u + 1) % 4, *nxt)
        ex(0)
        EX(sb, 0, 4)
        if nxt:
            QKb((u + 1) % 4, *nxt)
        ex(1)
        EX(sb, 4, 8)
        ex("prepv")
        if prv:
            PVa((u - 1) % 4, *prv)
        ex(2)
        EX(sb, 8, 12)
        if prv:
            PVb((u - 1) % 4, *prv)
        ex(3)
        EX(sb, 12, 16)

    a(".p2align 3\nK2_loop:")
    for u in range(16):
        kt, q = u // 4, u % 4
        cur = (kt, q)
        nxt = (((u + 1) // 4) % 4, (u + 1) % 4)
        prv = (((u - 1) // 4) % 4, (u - 1) % 4)
        extra = {}
        lb = (kt - 1) % 4
        if q == 0:
            extra[0] = lambda lb=lb: (a("s_add_u32 s34, s34, 4096"), kvload(lb, 0))
        else:
            extra[0] = lambda lb=lb, q=q: kvload(lb, q)
        if q == 3:
            extra["pre"] = lambda: a("s_waitcnt vmcnt(9)")
        if q == 1:
            extra["prepv"] = lambda: a("s_waitcnt vmcnt(10)")
        if u == 15:
            extra[3] = lambda: a("s_sub_u32 s40, s40, 1\ns_cmp_lg_u32 s40, 0")
        slot(u, cur, nxt, prv, extra)
    a("s_cbranch_scc1 K2_loop")
    stamp(a, 3)

    seq = [(0, q) for q in range(4)] + [(b, q) for q in range(4) for b in (1, 2, 3)]
    def wr(q, lo, hi):
        for j in range(lo, hi):
            a(f"ds_write_b128 v{4+q}, {vr(O+16*q+4*j,4)} offset:{1024*j}")
    def rd(i, lo, hi):
        for j in range(lo, hi):
            a(f"ds_read_b128 {vr(O+16*i+4*j,4)}, v7 offset:{4096*i+1024*j}")
    for u in range(16):
        cur = seq[u]
        nxt = seq[u + 1] if u + 1 < 16 else None
        prv = seq[u - 1] if u > 0 else (3, 3)
        extra = {}
        if u == 0:
            extra[0] = lambda: (a("s_add_u32 s34, s34, 4096"), kvload(3, 0))
            extra[1] = lambda: kvload(3, 1)
        if u == 1:
            extra[0] = lambda: kvload(3, 2)
            extra[1] = lambda: kvload(3, 3)
            extra["prepv"] = lambda: a("s_waitcnt vmcnt(12)")
        if u == 3:
            extra["pre"] = lambda: a("s_waitcnt vmcnt(4)")
        if u == 5:
            extra["pre"] = lambda: a("s_waitcnt vmcnt(2)")
        if u == 7:
            extra["prepv"] = lambda: a("s_waitcnt vmcnt(0)")
        for q in range(3):
            if u == 8 + 3 * q:
                extra[2] = lambda q=q: wr(q, 0, 2)
                extra[3] = lambda q=q: wr(q, 2, 4)
        if u == 15:
            break
        slot(u, cur, nxt, prv, extra)
    EX(3, 0, 2)
    PVa(2, *seq[14])
    a("s_waitcnt lgkmcnt(0)\ns_barrier")
    rd(0, 0, 4)
    EX(3, 2, 6)
    PVb(2, *seq[14])
    rd(1, 0, 4)
    EX(3, 6, 10)
    PVa(3, *seq[15])
    rd(2, 0, 4)
    EX(3, 10, 16)
    a("s_waitcnt lgkmcnt(4)")
    a(f"v_pk_add_f32 {vr(O,2)}, {vr(O,2)}, {vr(O+16,2)}")
    PVb(3, *seq[15])
    for i in range(1, 8):
        a(f"v_pk_add_f32 {vr(O+2*i,2)}, {vr(O+2*i,2)}, {vr(O+16+2*i,2)}")
    a("s_waitcnt lgkmcnt(0)")
    for i in range(8):
        a(f"v_pk_add_f32 {vr(O+2*i,2)}, {vr(O+2*i,2)}, {vr(O+32+2*i,2)}")
    for i in range(8):
        a(f"v_pk_add_f32 {vr(O+2*i,2)}, {vr(O+2*i,2)}, {vr(O+48+2*i,2)}")
    stamp(a, 4)
    T = S
    a(f"""
    v_mov_b32 v8, v{O+12}
    v_mov_b32 v9, v{O+12}
    v_pk_add_f32 {vr(T,2)}, {vr(O,2)}, {vr(O+2,2)}
    v_pk_add_f32 {vr(T+2,2)}, {vr(O+4,2)}, {vr(O+6,2)}
    v_permlane32_swap_b32 v8, v9
    v_pk_add_f32 {vr(T+4,2)}, {vr(O+8,2)}, {vr(O+10,2)}
    v_pk_add_f32 {vr(T+6,2)}, {vr(O+12,2)}, {vr(O+14,2)}
    v_rcp_f32 v10, v9
    v_pk_add_f32 {vr(T,2)}, {vr(T,2)}, {vr(T+2,2)}
    v_pk_add_f32 {vr(T+4,2)}, {vr(T+4,2)}, {vr(T+6,2)}
    s_mov_b32 s42, {f32bits(2.0**60):#x}
    v_pk_add_f32 {vr(T,2)}, {vr(T,2)}, {vr(T+4,2)}
    v_cmp_gt_f32 s[44:45], s42, v9
    v_add_f32 v{T}, v{T}, v{T+1}
    v_cmp_gt_f32 s[46:47], s42, v10
    s_movk_i32 s43, 0x1f8
    v_cmp_class_f32 vcc, v{T}, s43
    s_and_b64 s[44:45], s[44:45], s[46:47]
    s_nop 0
    s_and_b64 s[44:45], s[44:45], vcc
    s_cmp_eq_u64 s[44:45], -1
    s_cbranch_scc0 K2_fallback
K2_finish:
    """)
    for i in range(8):
        a(f"v_pk_mul_f32 {vr(O+2*i,2)}, {vr(O+2*i,2)}, v[10:11] op_sel_hi:[1,0]")
    for i in range(8):
        a(f"v_cvt_pk_bf16_f32 v{T+i}, v{O+2*i}, v{O+2*i+1}")
    a(f"""
    s_lshl_b32 s38, s25, 2
    s_add_u32 s38, s38, s26
    s_lshl_b32 s38, s38, 4
    s_add_u32 s38, s38, s24
    s_lshl_b32 s38, s38, 11
    s_add_u32 s38, s38, {WS_O}
    s_mov_b32 exec_lo, 0
    v_mov_b32 v{T+6}, 0
    v_mov_b32 v{T+7}, 0
    s_mov_b32 exec_lo, -1
    buffer_store_dwordx4 {vr(T,4)}, v3, s[16:19], s38 offen
    buffer_store_dwordx4 {vr(T+4,4)}, v3, s[16:19], s38 offen offset:1024
    """)
    stamp(a, 5)
    if STAMPS: a("s_waitcnt vmcnt(0)")
    stamp_out(a, 1, 6)
    a(f"""
K2_end:
    s_endpgm
    """)
    Q3 = Q + 24
    a(f"""
K2_fallback:
    s_mov_b32 exec_lo, 0
    v_mov_b32 v{Q3+6}, 0
    s_mov_b32 exec_lo, -1
    s_lshl_b32 s35, s24, 18
    s_add_u32 s35, s35, {WS_KV}
    s_mov_b32 s34, s35
    s_mov_b32 s40, 64
    v_mov_b32 v12, 0xff800000
K2_fb1:
    """)
    kvload(0, 0); kvload(0, 1)
    a("s_waitcnt vmcnt(0)")
    QKa(0, 0, 3); QKb(0, 0, 3)
    a("s_nop 15")
    for i in range(8):
        a(f"v_max3_f32 v12, v12, v{S+2*i}, v{S+2*i+1}")
    a(f"""
    s_add_u32 s34, s34, 4096
    s_sub_u32 s40, s40, 1
    s_cmp_lg_u32 s40, 0
    s_cbranch_scc1 K2_fb1
    v_mov_b32 v13, v12
    s_nop 1
    v_permlane32_swap_b32 v12, v13
    s_nop 1
    v_max_f32 v12, v12, v13
    s_mov_b32 s34, s35
    s_mov_b32 s40, 64
    """)
    for i in range(16):
        a(f"v_mov_b32 v{O+i}, 0")
    a("K2_fb2:")
    for p in range(4):
        kvload(0, p)
    a("s_waitcnt vmcnt(0)")
    QKa(0, 0, 3); QKb(0, 0, 3)
    a("s_nop 15")
    for i in range(16):
        a(f"v_sub_f32 v{S+i}, v{S+i}, v12")
    EX(0, 0, 16)
    a("s_nop 1")
    PVa(0, 0, 0); PVb(0, 0, 0)
    a(f"""
    s_add_u32 s34, s34, 4096
    s_sub_u32 s40, s40, 1
    s_cmp_lg_u32 s40, 0
    s_cbranch_scc1 K2_fb2
    s_nop 15
    v_mov_b32 v8, v{O+12}
    v_mov_b32 v9, v{O+12}
    s_nop 1
    v_permlane32_swap_b32 v8, v9
    s_nop 1
    v_rcp_f32 v10, v9
    s_nop 0
    s_branch K2_finish
    """)
    gen_moe(a)
    return 240


def gen_moe(a):
    XS = 16
    WD = 48
    G, U = 80, 96
    F = 112
    PART = 57344
    HB = 57344 + 4096
    a(f"""
K2_moe:
    s_load_dwordx2 s[4:5], s[0:1], 0
    s_load_dwordx4 s[44:47], s[0:1], 40
    s_load_dwordx2 s[48:49], s[0:1], 56
    s_sub_u32 s24, s2, 256
    v_and_b32 v5, 31, v1
    v_lshrrev_b32 v6, 5, v1
    v_and_b32 v8, 3, v1
    v_lshrrev_b32 v7, 2, v1
    v_mul_u32_u24 v7, 3584, v7
    v_lshl_add_u32 v7, v8, 4, v7
    s_lshl_b32 s34, s24, 6
    v_add_u32 v7, s34, v7
    v_lshlrev_b32 v9, 3, v1
    s_waitcnt lgkmcnt(0)
    """)
    srd(a, 16, 32, 33, WS_SIZE)
    srd(a, 8, 4, 5, 2048 * 896)
    srd(a, 12, 44, 45, 448 * 3584)
    srd(a, 20, 46, 47, 448 * 3584)
    srd(a, 28, 48, 49, 1792 * 896)
    a(f"""
    s_mov_b32 s34, {WS_CAND}
    buffer_load_dwordx2 v[10:11], v9, s[16:19], s34 offen
    s_mul_i32 s36, s26, {7*16*3584}
    s_mul_i32 s37, s26, 14336
    """)
    for s in range(7):
        a(f"""
        s_add_u32 m0, s37, {s*2048}
        s_add_u32 s38, s36, {s*16*3584}
        buffer_load_dwordx4 v7, s[12:15], s38 offen lds
        s_add_u32 m0, s37, {s*2048+1024}
        s_nop 0
        buffer_load_dwordx4 v7, s[20:23], s38 offen lds
        """)
    a(f"""
    v_lshrrev_b32 v12, 4, v1
    v_mul_u32_u24 v12, 896, v12
    v_and_b32 v13, 15, v1
    v_lshl_add_u32 v12, v13, 4, v12
    s_mul_i32 s38, s24, {32*896}
    s_lshl_b32 s39, s26, 8
    s_add_u32 s38, s38, s39
    """)
    for i in range(8):
        a(f"buffer_load_dwordx4 {vr(WD+4*i,4)}, v12, s[28:31], s38 offen")
        if i < 7:
            a("s_add_u32 s38, s38, 3584")
    stamp(a, 1)
    a("s_waitcnt vmcnt(22)")
    stamp(a, 2)
    a(f"""
    s_mov_b32 s40, 0
    s_mov_b32 s41, 0x80000000
K2_bis:
    s_or_b32 s42, s40, s41
    v_cmp_le_u32 s[50:51], s42, v10
    v_cmp_le_u32 s[52:53], s42, v11
    s_lshr_b32 s41, s41, 1
    s_nop 1
    s_bcnt1_i32_b64 s43, s[50:51]
    s_bcnt1_i32_b64 s54, s[52:53]
    s_add_u32 s43, s43, s54
    s_cmp_ge_u32 s43, 8
    s_cselect_b32 s40, s42, s40
    s_cmp_eq_u32 s43, 8
    s_cbranch_scc1 K2_bisdone
    s_cmp_lg_u32 s41, 0
    s_cbranch_scc1 K2_bis
K2_bisdone:
    """)
    stamp(a, 3)
    a(f"""
    s_bcnt1_i32_b64 s43, s[50:51]
    v_mbcnt_lo_u32_b32 v13, s50, 0
    v_mbcnt_hi_u32_b32 v13, s51, v13
    v_mbcnt_lo_u32_b32 v14, s52, 0
    v_mbcnt_hi_u32_b32 v14, s53, v14
    v_add_u32 v14, s43, v14
    s_lshl_b32 s38, s26, 5
    s_add_u32 s38, s38, {HB+512}
    v_and_b32 v13, 7, v13
    v_and_b32 v14, 7, v14
    v_lshl_add_u32 v13, v13, 2, s38
    v_lshl_add_u32 v14, v14, 2, s38
    s_mov_b64 exec, s[50:51]
    ds_write_b32 v13, v10
    s_mov_b64 exec, s[52:53]
    ds_write_b32 v14, v11
    s_mov_b64 exec, -1
    v_and_b32 v13, 7, v1
    v_lshl_add_u32 v14, v13, 2, s38
    ds_read_b32 v10, v14
    s_waitcnt lgkmcnt(0)
    v_and_b32 v11, 0x7ff, v10
    v_sub_u32 v11, 2047, v11
    v_mul_u32_u24 v11, 896, v11
    v_lshl_add_u32 v11, v6, 4, v11
    s_mul_i32 s38, s26, {7*32}
    """)
    for s in range(7):
        a(f"buffer_load_dwordx4 {vr(XS+4*s,4)}, v11, s[8:11], s38 offen offset:{32*s}")
    a(f"""
    s_add_u32 s38, s24, s26
    s_cmp_lg_u32 s38, 0
    s_cbranch_scc1 K2_nosel
    v_lshlrev_b32 v14, 2, v13
    s_mov_b32 s38, {WS_SEL}
    s_mov_b64 exec, 0xff
    buffer_store_dword v10, v14, s[16:19], s38 offen
    s_mov_b64 exec, -1
K2_nosel:
    v_bfe_u32 v2, v1, 2, 2
    v_lshlrev_b32 v15, 9, v6
    v_lshl_add_u32 v15, v2, 6, v15
    v_lshl_add_u32 v15, v8, 3, v15
    v_bfe_u32 v9, v1, 4, 1
    v_lshl_add_u32 v15, v9, 5, v15
    v_add_u32 v15, s37, v15
    s_waitcnt vmcnt(0)
    """)
    for s in range(7):
        b = F + 8 * (s % 2)
        a(f"""
        ds_read_b64_tr_b16 {vr(b,2)}, v15 offset:{s*2048}
        ds_read_b64_tr_b16 {vr(b+2,2)}, v15 offset:{s*2048+256}
        ds_read_b64_tr_b16 {vr(b+4,2)}, v15 offset:{s*2048+1024}
        ds_read_b64_tr_b16 {vr(b+6,2)}, v15 offset:{s*2048+1280}
        s_waitcnt lgkmcnt(0)
        {MF} {vr(G,16)}, {vr(b,4)}, {vr(XS+4*s,4)}, {"0" if s==0 else vr(G,16)}
        {MF} {vr(U,16)}, {vr(b+4,4)}, {vr(XS+4*s,4)}, {"0" if s==0 else vr(U,16)}
        """)
    stamp(a, 4)
    a(f"""
    v_lshlrev_b32 v12, 4, v1
    v_add_u32 v12, s37, v12
    """)
    for i in range(8):
        a(f"ds_write_b128 v12, {vr(WD+4*i,4)} offset:{1024*i}")
    a(f"""
    v_lshlrev_b32 v13, 7, v5
    v_lshl_add_u32 v13, v6, 4, v13
    v_add_u32 v13, s37, v13
    s_mov_b32 exec_lo, 0xff
    s_mov_b32 exec_hi, 0xff
    s_nop 1
    """)
    for i in range(4):
        a(f"ds_write_b128 v13, {vr(G+4*i,4)} offset:{8192+32*i}")
        a(f"ds_write_b128 v13, {vr(U+4*i,4)} offset:{8192+1024+32*i}")
    a(f"""
    s_mov_b64 exec, -1
    v_lshlrev_b32 v13, 2, v0
    s_waitcnt lgkmcnt(0)
    s_barrier
    """)
    for w in range(4):
        a(f"ds_read_b32 v{16+w}, v13 offset:{w*14336+8192}")
        a(f"ds_read_b32 v{20+w}, v13 offset:{w*14336+8192+1024}")
    a(f"""
    v_lshlrev_b32 v14, 1, v0
    s_waitcnt lgkmcnt(0)
    v_add_f32 v16, v16, v17
    v_add_f32 v18, v18, v19
    v_add_f32 v20, v20, v21
    v_add_f32 v22, v22, v23
    v_add_f32 v16, v16, v18
    v_add_f32 v20, v20, v22
    v_cvt_pk_bf16_f32 v16, v16, v20
    v_and_b32 v20, 0xffff0000, v16
    v_lshlrev_b32 v16, 16, v16
    v_mul_f32 v17, {f32bits(-LOG2E):#x}, v16
    v_exp_f32 v17, v17
    s_nop 0
    v_add_f32 v17, 1.0, v17
    v_rcp_f32 v17, v17
    s_nop 0
    v_mul_f32 v16, v16, v17
    v_cvt_pk_bf16_f32 v16, v16, v16
    v_and_b32 v16, 0xffff0000, v16
    v_mul_f32 v16, v16, v20
    v_cvt_pk_bf16_f32 v16, v16, v16
    ds_write_b16 v14, v16 offset:{HB}
    v_and_b32 v13, 7, v1
    v_lshlrev_b32 v13, 6, v13
    v_lshl_add_u32 v13, v6, 4, v13
    v_lshlrev_b32 v15, 11, v6
    v_lshl_add_u32 v15, v2, 8, v15
    v_lshl_add_u32 v15, v8, 3, v15
    v_lshl_add_u32 v15, v9, 5, v15
    v_add_u32 v15, s37, v15
    s_waitcnt lgkmcnt(0)
    s_barrier
    ds_read_b128 v[16:19], v13 offset:{HB}
    ds_read_b128 v[20:23], v13 offset:{HB+32}
    """)
    FR = 24
    Y = 64
    for t in range(4):
        for s in range(2):
            b = FR + 8 * t + 4 * s
            a(f"ds_read_b64_tr_b16 {vr(b,2)}, v15 offset:{s*4096+64*t}")
            a(f"ds_read_b64_tr_b16 {vr(b+2,2)}, v15 offset:{s*4096+64*t+1024}")
        if t == 1:
            a("s_waitcnt lgkmcnt(0)")
    a(f"""
    v_mul_u32_u24 v13, 1792, v5
    v_lshl_add_u32 v13, v6, 4, v13
    s_mul_i32 s38, s24, 14336
    s_lshl_b32 s39, s26, 9
    s_add_u32 s38, s38, s39
    s_add_u32 s38, s38, {WS_Y}
    s_waitcnt lgkmcnt(0)
    """)
    for t in range(4):
        a(f"{MF} {vr(Y+16*t,16)}, {vr(FR+8*t,4)}, v[16:19], 0")
        a(f"{MF} {vr(Y+16*t,16)}, {vr(FR+8*t+4,4)}, v[20:23], {vr(Y+16*t,16)}")
    a(f"""
    s_mov_b32 exec_lo, 0xff
    s_mov_b32 exec_hi, 0xff
    s_nop 15
    """)
    for t in range(4):
        if t == 2:
            a("s_cmp_eq_u32 s26, 3\ns_cbranch_scc1 K2_moe_end")
        for i in range(4):
            a(f"buffer_store_dwordx4 {vr(Y+16*t+4*i,4)}, v13, s[16:19], s38 offen offset:{128*t+32*i}")
    a("K2_moe_end:")
    stamp(a, 5)
    if STAMPS: a("s_waitcnt vmcnt(0)")
    stamp_out(a, 1, 6)
    a("s_endpgm")


K3_WREG = 29 * 1024
K3_OB = 4 * K3_WREG
K3_YB = K3_OB + 32768
K3_LDS = K3_YB + 4096


def gen_k3(a):
    head(a, "proj_kernel")
    ACC = 16
    XR = 32
    BX = 40
    FR = 64
    a(f"""
    s_cmp_ge_u32 s2, 256
    s_cbranch_scc1 K3_end
    """)
    stamp(a, 0)
    a(f"""
    s_load_dwordx2 s[4:5], s[0:1], 0
    s_load_dwordx2 s[6:7], s[0:1], 16
    s_load_dwordx2 s[30:31], s[0:1], 72
    s_load_dwordx2 s[32:33], s[0:1], 88
    v_lshrrev_b32 v2, 6, v0
    v_and_b32 v1, 63, v0
    s_and_b32 s24, s2, 7
    s_lshr_b32 s34, s2, 5
    v_readfirstlane_b32 s26, v2
    s_lshl_b32 s34, s34, 3
    s_add_u32 s24, s24, s34
    s_bfe_u32 s25, s2, 0x20003
    s_lshl_b32 s27, s25, 2
    s_add_u32 s27, s27, s26
    v_and_b32 v5, 31, v1
    v_lshrrev_b32 v6, 5, v1
    v_and_b32 v8, 3, v1
    v_lshlrev_b32 v3, 4, v1
    v_lshrrev_b32 v7, 2, v1
    v_mul_u32_u24 v7, 896, v7
    v_lshl_add_u32 v7, v8, 4, v7
    s_lshl_b32 s34, s27, 6
    v_add_u32 v7, s34, v7
    s_waitcnt lgkmcnt(0)
    s_add_u32 s34, s32, {WS_SEL}
    s_addc_u32 s35, s33, 0
    s_load_dwordx8 s[56:63], s[34:35], 0
    """)
    srd(a, 8, 4, 5, 2048 * 896)
    srd(a, 12, 6, 7, 448 * 896)
    srd(a, 16, 32, 33, WS_SIZE)
    srd(a, 20, 30, 31, 2048 * 896)
    a(f"""
    s_lshl_b32 s36, s24, 15
    s_lshl_b32 s37, s26, 13
    s_add_u32 s36, s36, s37
    s_add_u32 s36, s36, {WS_O}
    s_add_u32 m0, s37, {K3_OB}
    s_nop 0
    """)
    for i in range(8):
        if i == 4:
            a(f"s_add_u32 m0, s37, {K3_OB+4096}\ns_add_u32 s36, s36, 4096")
        a(f"buffer_load_dwordx4 v3, s[16:19], s36 offen offset:{1024*(i%4)} lds")
    a(f"""
    s_mul_i32 s37, s26, {K3_WREG}
    s_lshl_b32 s38, s24, 5
    v_add_u32 v9, s38, v5
    v_mul_u32_u24 v4, 896, v9
    v_lshl_add_u32 v4, v6, 3, v4
    s_lshl_b32 s38, s27, 6
    v_add_u32 v4, s38, v4
    v_lshlrev_b32 v9, 2, v9
    s_cmp_ge_u32 s27, 14
    s_cbranch_scc1 K3_skipw
    """)
    for i in range(29):
        a(f"""
        s_add_u32 m0, s37, {1024*i}
        s_mov_b32 s38, {i*16*896}
        buffer_load_dwordx4 v7, s[12:15], s38 offen lds
        """)
    a(f"""
    s_mov_b32 s38, {WS_G}
    buffer_load_dword v10, v9, s[16:19], s38 offen
    """)
    for i in range(4):
        a(f"buffer_load_dwordx2 {vr(XR+2*i,2)}, v4, s[8:11], 0 offen offset:{16*i}")
    a(f"""
K3_skipw:
    v_bfe_u32 v2, v1, 2, 2
    v_lshlrev_b32 v15, 8, v6
    v_lshl_add_u32 v15, v2, 6, v15
    v_lshl_add_u32 v15, v8, 3, v15
    v_bfe_u32 v9, v1, 4, 1
    v_lshl_add_u32 v15, v9, 5, v15
    v_add_u32 v15, s37, v15
    v_add_u32 v14, {K3_OB}, v3
    """)
    stamp(a, 1)
    a("s_waitcnt vmcnt(0) lgkmcnt(0)")
    stamp(a, 2)
    for i in range(8):
        a(f"v_lshlrev_b32 v{BX+2*i}, 16, v{XR+i}")
        a(f"v_and_b32 v{BX+2*i+1}, 0xffff0000, v{XR+i}")
    a(f"""
    s_mov_b32 s40, 0
K3_sel:
    s_mov_b32 m0, s40
    s_nop 0
    s_movrels_b32 s41, s56
    s_and_b32 s42, s41, 0x7ff
    s_sub_u32 s42, 2047, s42
    s_lshr_b32 s43, s42, 5
    s_cmp_lg_u32 s43, s24
    s_cbranch_scc1 K3_selnext
    v_lshrrev_b32 v11, 5, v0
    v_mul_u32_u24 v11, 14336, v11
    v_and_b32 v12, 31, v0
    v_lshl_add_u32 v11, v12, 4, v11
    s_mul_i32 s44, s40, 1792
    s_lshl_b32 s45, s25, 9
    s_add_u32 s44, s44, s45
    s_add_u32 s44, s44, {WS_Y}
    """)
    for i in range(7):
        a(f"buffer_load_dwordx4 {vr(FR+4*i,4)}, v11, s[16:19], s44 offen")
        if i < 6:
            a(f"s_add_u32 s44, s44, {8*14336}")
    a(f"""
    v_lshlrev_b32 v11, 4, v0
    v_add_u32 v11, {K3_YB}, v11
    s_waitcnt vmcnt(0)
    """)
    for i in range(1, 7):
        a(f"v_pk_add_f32 {vr(FR,2)}, {vr(FR,2)}, {vr(FR+4*i,2)}")
        a(f"v_pk_add_f32 {vr(FR+2,2)}, {vr(FR+2,2)}, {vr(FR+4*i+2,2)}")
    a(f"""
    s_barrier
    ds_write_b128 v11, {vr(FR,4)}
    s_lshl_b32 s44, s26, 7
    s_add_u32 s44, s44, {K3_YB}
    v_lshl_add_u32 v11, v6, 4, s44
    s_lshr_b32 s45, s41, 16
    s_and_b32 s46, s45, 0x8000
    s_cmp_lg_u32 s46, 0
    s_cselect_b32 s46, s46, 0xffff
    s_xor_b32 s45, s45, s46
    s_lshl_b32 s45, s45, 16
    v_mov_b32 v12, s45
    v_mul_f32 v12, {f32bits(-LOG2E):#x}, v12
    v_exp_f32 v12, v12
    s_and_b32 s42, s42, 31
    v_add_f32 v12, 1.0, v12
    v_rcp_f32 v12, v12
    v_cmp_eq_u32 vcc, s42, v5
    v_cvt_pk_bf16_f32 v12, v12, v12
    v_and_b32 v12, 0xffff0000, v12
    s_waitcnt lgkmcnt(0)
    s_barrier
    s_mov_b64 exec, vcc
    """)
    for i in range(4):
        for p in range(8):
            a(f"ds_read_b128 {vr(FR+4*p,4)}, v11 offset:{512*p+32*i}")
        a("s_waitcnt lgkmcnt(0)")
        for p in range(1, 8):
            a(f"v_pk_add_f32 {vr(FR,2)}, {vr(FR,2)}, {vr(FR+4*p,2)}")
            a(f"v_pk_add_f32 {vr(FR+2,2)}, {vr(FR+2,2)}, {vr(FR+4*p+2,2)}")
        for j in range(4):
            r = FR + j
            a(f"""
            v_cvt_pk_bf16_f32 v{r}, v{r}, v{r}
            v_and_b32 v{r}, 0xffff0000, v{r}
            v_mul_f32 v{r}, v{r}, v12
            v_cvt_pk_bf16_f32 v{r}, v{r}, v{r}
            v_and_b32 v{r}, 0xffff0000, v{r}
            v_add_f32 v{r}, v{r}, v{BX+4*i+j}
            v_cvt_pk_bf16_f32 v{r}, v{r}, v{r}
            v_and_b32 v{BX+4*i+j}, 0xffff0000, v{r}
            """)
    a(f"""
    s_mov_b64 exec, -1
K3_selnext:
    s_add_u32 s40, s40, 1
    s_cmp_lt_u32 s40, 8
    s_cbranch_scc1 K3_sel
    s_barrier
    s_cmp_ge_u32 s27, 14
    s_cbranch_scc1 K3_end
    """)
    stamp(a, 3)
    D = 4
    def reads(ks):
        b = FR + 8 * (ks % (D + 1))
        h, s = ks // 2, ks % 2
        o = (28 * h + 16 * s) * 64
        a(f"""
        ds_read_b128 {vr(b,4)}, v14 offset:{1024*ks}
        ds_read_b64_tr_b16 {vr(b+4,2)}, v15 offset:{o}
        ds_read_b64_tr_b16 {vr(b+6,2)}, v15 offset:{o+512}
        """)
    for ks in range(D):
        reads(ks)
    a(f"""
    v_cvt_pk_bf16_f32 v10, v10, v10
    v_and_b32 v10, 0xffff0000, v10
    v_mul_f32 v10, {f32bits(-LOG2E):#x}, v10
    v_exp_f32 v10, v10
    s_nop 0
    v_add_f32 v10, 1.0, v10
    v_rcp_f32 v10, v10
    s_nop 0
    v_cvt_pk_bf16_f32 v10, v10, v10
    v_and_b32 v10, 0xffff0000, v10
    v_sub_f32 v12, 1.0, v10
    v_cvt_pk_bf16_f32 v12, v12, v12
    v_and_b32 v12, 0xffff0000, v12
    """)
    for ks in range(32):
        if ks + D < 32:
            reads(ks + D)
        n = min(D, 31 - ks) * 3
        b = FR + 8 * (ks % (D + 1))
        a(f"s_waitcnt lgkmcnt({n})")
        a(f"{MF} {vr(ACC,16)}, {vr(b+4,4)}, {vr(b,4)}, {'0' if ks==0 else vr(ACC,16)}")
        if 8 <= ks < 16:
            i = ks - 8
            a(f"""
            v_pk_mul_f32 {vr(BX+2*i,2)}, {vr(BX+2*i,2)}, v[12:13] op_sel_hi:[1,0]
            v_cvt_pk_bf16_f32 v{BX+2*i}, v{BX+2*i}, v{BX+2*i+1}
            v_and_b32 v{BX+2*i+1}, 0xffff0000, v{BX+2*i}
            v_lshlrev_b32 v{BX+2*i}, 16, v{BX+2*i}
            """)
    a("s_nop 15")
    stamp(a, 4)
    for i in range(8):
        r = ACC + 2 * i
        a(f"""
        v_cvt_pk_bf16_f32 v{r}, v{r}, v{r+1}
        v_and_b32 v{r+1}, 0xffff0000, v{r}
        v_lshlrev_b32 v{r}, 16, v{r}
        v_pk_mul_f32 {vr(r,2)}, {vr(r,2)}, v[10:11] op_sel_hi:[1,0]
        v_cvt_pk_bf16_f32 v{r}, v{r}, v{r+1}
        v_and_b32 v{r+1}, 0xffff0000, v{r}
        v_lshlrev_b32 v{r}, 16, v{r}
        v_pk_add_f32 {vr(r,2)}, {vr(r,2)}, {vr(BX+2*i,2)}
        v_cvt_pk_bf16_f32 v{XR+i}, v{r}, v{r+1}
        """)
        if i % 2 == 1:
            a(f"buffer_store_dwordx2 {vr(XR+i-1,2)}, v4, s[20:23], 0 offen offset:{16*(i//2)}")
    stamp(a, 5)
    if STAMPS: a("s_waitcnt vmcnt(0)")
    stamp_out(a, 2, 6)
    a("K3_end:\ns_endpgm")
    return 112


def main(path):
    a = A()
    hdr = f"""; generated by gen1.py
; @launch kernel=qkv_kernel grid=(256,1,1) block=(256,1,1) lds={K1_LDS}
; @launch kernel=attn_kernel grid=({256+NMOE},1,1) block=(256,1,1) lds={K2_LDS}
; @launch kernel=proj_kernel grid=(256,1,1) block=(256,1,1) lds={K3_LDS}
.amdgcn_target "amdgcn-amd-amdhsa--gfx950"
.text
"""
    v1 = gen_k1_full(a)
    v2 = gen_k2(a)
    v3 = gen_k3(a)
    txt = hdr + a.text() + '.section .rodata,"a"\n' + kd("qkv_kernel", v1) + kd("attn_kernel", v2) + kd("proj_kernel", v3)
    open(path, "w").write(txt)


if __name__ == "__main__":
    main(sys.argv[1] if len(sys.argv) > 1 and not sys.argv[1].startswith("--") else f"cdna_kernels/{NAME}.s")
```

```python
import sys, math, struct
NAME = "gated_mix__softmax_full_mha__moe_arch_mod__prompt"
def f32bits(x): return struct.unpack("<I", struct.pack("<f", x))[0]
LOG2E = 1.4426950408889634
QSCALE = (28 ** -0.5) * LOG2E
class A:
    def __init__(self): self.l = []
    def __call__(self, s):
        for line in s.strip("\n").split("\n"):
            line = line.strip()
            if not line: continue
            if line.endswith(":") or line.startswith("."): self.l.append(line)
            else: self.l.append("    " + line)
    def text(self): return "\n".join(self.l) + "\n"
def vr(b, n): return f"v[{b}:{b+n-1}]"
def srd(a, d, lo, hi, size):
    a(f"""
    s_mov_b32 s{d}, s{lo}
    s_and_b32 s{d+1}, s{hi}, 0xffff
    s_mov_b32 s{d+2}, {size:#x}
    s_mov_b32 s{d+3}, 0x20000
    """)
def srd_inplace(a, d, size):
    a(f"""
    s_mov_b32 s{d+2}, {size:#x}
    s_mov_b32 s{d+3}, 0x20000
    """)
def kd(name, vgpr, sgpr=96):
    v4 = (vgpr + 3) // 4 * 4
    return f""".p2align 6
.amdhsa_kernel {name}
  .amdhsa_next_free_vgpr {vgpr}
  .amdhsa_next_free_sgpr {sgpr}
  .amdhsa_accum_offset {v4}
  .amdhsa_group_segment_fixed_size 0
  .amdhsa_kernarg_size 96
  .amdhsa_user_sgpr_count 2
  .amdhsa_user_sgpr_kernarg_segment_ptr 1
  .amdhsa_system_sgpr_workgroup_id_x 1
.end_amdhsa_kernel
"""
def head(a, name):
    a(f""".globl {name}
.p2align 8
.type {name},@function
{name}:""")
MF = "v_mfma_f32_32x32x16_bf16"
SM = "v_smfmac_f32_32x32x32_bf16"
STAMPS = "--stamps" in sys.argv
WS_STAMP = 0x9f0000
def stamp(a, i):
    if STAMPS:
        op = "s_memtime" if "--cyc" in sys.argv else "s_memrealtime"
        a(f"{op} s[88:89]\ns_waitcnt lgkmcnt(0)\ns_mov_b32 s{72+i}, s88")
def stamp_out(a, kern, n):
    if not STAMPS: return
    a("s_waitcnt vmcnt(0)")
    stamp(a, n)
    a(f"""
    s_mov_b64 exec, 1
    s_lshl_b32 s90, s2, 2
    s_add_u32 s90, s90, s26
    s_lshl_b32 s90, s90, 6
    s_add_u32 s90, s90, {WS_STAMP + kern*0x10000}
    v_mov_b32 v0, 0
    """)
    for i in range(n + 1):
        a(f"v_mov_b32 v1, s{72+i}\nbuffer_store_dword v1, v0, s[16:19], s90 offen offset:{4*i}")
def bisect8(a, tag, va, vb):
    a(f"""
    s_mov_b32 s40, 0
    s_mov_b32 s41, 0x80000000
{tag}_bis:
    s_or_b32 s42, s40, s41
    v_cmp_le_u32 s[50:51], s42, v{va}
    v_cmp_le_u32 s[52:53], s42, v{vb}
    s_lshr_b32 s41, s41, 1
    s_nop 0
    s_bcnt1_i32_b64 s43, s[50:51]
    s_bcnt1_i32_b64 s54, s[52:53]
    s_add_u32 s43, s43, s54
    s_cmp_ge_u32 s43, 8
    s_cselect_b32 s40, s42, s40
    s_cmp_eq_u32 s43, 8
    s_cselect_b32 s41, 0, s41
    s_cmp_lg_u32 s41, 0
    s_cbranch_scc1 {tag}_bis
    """)
def positions8(a, pa, pb):
    a(f"""
    s_bcnt1_i32_b64 s43, s[50:51]
    v_mbcnt_lo_u32_b32 v{pa}, s50, 0
    v_mbcnt_hi_u32_b32 v{pa}, s51, v{pa}
    v_mbcnt_lo_u32_b32 v{pb}, s52, 0
    v_mbcnt_hi_u32_b32 v{pb}, s53, v{pb}
    v_add_u32 v{pb}, s43, v{pb}
    v_and_b32 v{pa}, 7, v{pa}
    v_and_b32 v{pb}, 7, v{pb}
    """)
```

```python
from common import *

WS_Q = 0
WS_KV = 0x200000
WS_O = 0x600000
WS_G = 0x800000
WS_CAND = 0x802000
WS_SEL = 0x803000
WS_Y = 0x810000
WS_SIZE = 0xA40000
NMOE = 56

K1_LDS = 65536 + 28 * 3072


def xdma_addr(a, DX):
    a(f"""
    v_lshrrev_b32 v{DX}, 3, v1
    v_mul_u32_u24 v{DX}, 896, v{DX}
    v_and_b32 v2, 7, v1
    v_lshrrev_b32 v3, 4, v1
    v_xor_b32 v2, v2, v3
    v_lshl_add_u32 v{DX}, v2, 4, v{DX}
    v_xor_b32 v{DX+1}, 64, v{DX}
    v_add_u32 v{DX+2}, {16*896}, v{DX}
    v_add_u32 v{DX+1}, {8*896}, v{DX+1}
    v_add_u32 v{DX+3}, {16*896}, v{DX+1}
    """)


def xread_addr(a, RX, sbase):
    a(f"""
    v_bfe_u32 v2, v1, 1, 3
    v_xor_b32 v2, v2, v6
    v_lshlrev_b32 v3, 7, v5
    v_add_u32 v3, s{sbase}, v3
    v_lshl_add_u32 v{RX}, v2, 4, v3
    v_xor_b32 v{RX+1}, 32, v{RX}
    v_xor_b32 v{RX+2}, 64, v{RX}
    v_xor_b32 v{RX+3}, 96, v{RX}
    """)


def gen_k1(a):
    head(a, "qkv_kernel")
    DX, DW, RX, RW = 8, 12, 16, 13
    FR = 20
    ACC = 52
    AD = 100
    PC = 116
    a(f"""
    s_cmp_ge_u32 s2, 256
    s_cbranch_scc1 K1_end
    """)
    stamp(a, 0)
    a(f"""
    s_load_dwordx2 s[8:9], s[0:1], 0
    s_load_dwordx2 s[12:13], s[0:1], 8
    s_load_dwordx2 s[16:17], s[0:1], 88
    v_lshrrev_b32 v2, 6, v0
    v_and_b32 v1, 63, v0
    s_and_b32 s34, s2, 7
    s_lshr_b32 s29, s2, 3
    v_readfirstlane_b32 s26, v2
    s_mov_b32 s10, {2048*896}
    s_mov_b32 s11, 0x20000
    s_mov_b32 s18, {WS_SIZE}
    s_mov_b32 s19, 0x20000
    """)
    xdma_addr(a, DX)
    a(f"""
    s_cmp_ge_u32 s29, 28
    s_cbranch_scc1 K1_router
    s_mul_i32 s36, s29, 37
    s_lshr_b32 s36, s36, 8
    s_mul_i32 s37, s36, 7
    s_sub_u32 s37, s29, s37
    s_and_b32 s24, s34, 1
    s_mul_i32 s24, s24, 7
    s_add_u32 s24, s24, s37
    s_lshr_b32 s25, s34, 1
    s_lshl_b32 s25, s25, 2
    s_add_u32 s25, s25, s36
    s_lshl_b32 s28, s36, 1
    s_add_u32 s28, s28, s37
    s_cmp_ge_u32 s28, 7
    s_cselect_b32 s36, 7, 0
    s_sub_u32 s28, s28, s36
    s_lshl_b32 s27, s25, 2
    s_add_u32 s27, s27, s26
    s_mov_b32 s14, {448*2688}
    s_mov_b32 s15, 0x20000
    v_lshrrev_b32 v{DW}, 2, v1
    v_mul_u32_u24 v{DW}, 2688, v{DW}
    v_and_b32 v7, 3, v1
    v_lshl_add_u32 v{DW}, v7, 4, v{DW}
    s_mul_i32 s32, s24, 192
    s_mul_i32 s36, s26, {16*2688}
    s_add_u32 s32, s32, s36
    s_mul_i32 s33, s27, {32*896}
    s_lshl_b32 s35, s26, 14
    s_mul_i32 s36, s26, 3072
    s_add_u32 s36, s36, 65536
    """)

    def offs():
        a(f"""
        s_mul_i32 s30, s28, {64*2688}
        s_lshl_b32 s31, s28, 7
        s_add_u32 s30, s30, s32
        s_add_u32 s31, s31, s33
        s_add_u32 s28, s28, 1
        s_cmp_eq_u32 s28, 7
        s_cselect_b32 s28, 0, s28
        """)
    def dma(g, n):
        if n < 3:
            a(f"""
            s_add_u32 m0, s36, {g*4*3072 + n*960}
            s_nop 0
            buffer_load_dwordx4 v{DW}, s[12:15], s30 offen offset:{64*n} lds
            """)
        else:
            i = n - 3
            a(f"""
            s_add_u32 m0, s35, {(g%4)*4096 + i*1024}
            s_nop 0
            buffer_load_dwordx4 v{DX+i}, s[8:11], s31 offen lds
            """)
    offs()
    a("s_waitcnt lgkmcnt(0)")
    for n in range(7):
        dma(0, n)
    offs()
    for n in range(7):
        dma(1, n)
    stamp(a, 1)
    a(f"""
    s_load_dwordx4 s[44:47], s[0:1], 40
    s_load_dwordx2 s[48:49], s[0:1], 56
    s_load_dwordx2 s[56:57], s[0:1], 16
    v_and_b32 v5, 31, v1
    v_lshrrev_b32 v6, 5, v1
    """)
    xread_addr(a, RX, 35)
    a(f"""
    v_bfe_u32 v2, v1, 2, 2
    v_lshlrev_b32 v{RW}, 9, v6
    v_lshl_add_u32 v{RW}, v2, 6, v{RW}
    v_lshl_add_u32 v{RW}, v7, 3, v{RW}
    v_bfe_u32 v2, v1, 4, 1
    v_lshl_add_u32 v{RW}, v2, 5, v{RW}
    v_add_u32 v{RW}, 65536, v{RW}
    v_and_b32 v14, 0x13, v5
    v_bfe_u32 v2, v1, 2, 1
    v_lshl_or_b32 v14, v2, 3, v14
    v_bfe_u32 v2, v1, 3, 1
    v_lshl_or_b32 v14, v2, 2, v14
    v_lshlrev_b32 v14, 4, v14
    """)
    a(f"""
    s_waitcnt lgkmcnt(0)
    s_cmp_eq_u32 s26, 0
    s_cselect_b64 s[20:21], s[44:45], s[46:47]
    s_cmp_eq_u32 s26, 2
    s_cselect_b64 s[20:21], s[48:49], s[20:21]
    s_cmp_eq_u32 s26, 3
    s_cselect_b64 s[20:21], s[56:57], s[20:21]
    s_mov_b32 s38, {448*896}
    s_cselect_b32 s22, s38, {448*3584}
    s_mov_b32 s23, 0x20000
    v_lshrrev_b32 v15, 2, v1
    v_mul_u32_u24 v15, 3584, v15
    v_lshl_add_u32 v15, v7, 7, v15
    s_mul_i32 s37, s34, 448
    s_and_b32 s37, s37, 0xffffff80
    s_mul_i32 s38, s29, {16*3584}
    s_add_u32 s37, s37, s38
    s_cmp_lt_u32 s26, 2
    s_cbranch_scc1 K1_pfset
    v_lshlrev_b32 v15, 7, v1
    s_mul_i32 s37, s34, {224*896}
    s_mul_i32 s38, s29, {56*128}
    s_add_u32 s37, s37, s38
    s_cmp_eq_u32 s26, 2
    s_cbranch_scc1 K1_pfset
    s_mul_i32 s37, s29, {112*128}
K1_pfset:
    s_mul_i32 s38, s24, 3
    s_cmp_gt_u32 s24, 9
    s_cbranch_scc1 K1_VVV
    s_cmp_eq_u32 s24, 9
    s_cbranch_scc1 K1_QVV
    """)

    def variant(types):
        tag = "K1_" + types
        a(f"{tag}:")
        nq = types.count("Q")
        a(f"""
        s_lshl_b32 s42, s27, 11
        s_lshl_b32 s43, s27, 12
        s_add_u32 s43, s43, {WS_KV}
        """)
        if nq:
            a(f"v_mov_b32 v{PC+4}, 0x3f80\nv_mov_b32 v{PC+5}, 0")
        if nq < 3:
            a(f"""
            v_cmp_eq_u32 vcc, 0, v7
            v_mov_b32 v2, 0x3f803f80
            s_nop 0
            v_cndmask_b32 v{PC}, 0, v2, vcc
            v_cndmask_b32 v{PC+1}, 0, v2, vcc
            v_cndmask_b32 v{PC+2}, 0, v2, vcc
            v_cndmask_b32 v{PC+3}, 0, v2, vcc
            """)
        for j, ty in enumerate(types):
            ad = AD + 5 * j
            if ty == "Q":
                a(f"""
                s_add_u32 s39, s38, {j}
                s_cmp_lt_u32 s39, 14
                s_cselect_b32 s{58+j}, s42, s43
                s_cselect_b32 s{62+2*j}, {f32bits(QSCALE):#x}, 1.0
                s_cselect_b32 s40, 17, 18
                s_cselect_b32 s41, 0, 14
                s_mov_b32 s{63+2*j}, s{62+2*j}
                s_sub_u32 s39, s39, s41
                """)
            else:
                a(f"""
                s_add_u32 s39, s38, {j-28}
                s_mov_b32 s40, 18
                s_mov_b32 s{58+j}, s43
                """)
            a(f"""
            s_mul_i32 s41, s39, {8*147}
            s_lshr_b32 s41, s41, 10
            s_cmp_eq_u32 s39, 6
            s_cselect_b32 s44, 1, 0
            s_cmp_eq_u32 s39, 13
            s_cselect_b32 s44, 1, s44
            v_mul_u32_u24 v2, s44, v6
            v_add_u32 v2, s41, v2
            v_lshlrev_b32 v2, s40, v2
            """)
            if ty == "Q":
                a(f"""
                v_add_u32 v2, {1024+512+8}, v2
                v_add_u32 v{ad+4}, v2, v14
                s_lshl_b32 s39, s39, 3
                """)
                for i in range(4):
                    a(f"""
                    s_add_u32 s41, s39, {2*i}
                    v_add_u32 v2, s41, v6
                    v_mul_u32_u24 v3, 147, v2
                    v_lshrrev_b32 v3, 10, v3
                    v_mul_u32_u24 v4, 7, v3
                    v_sub_u32 v2, v2, v4
                    v_lshlrev_b32 v3, s40, v3
                    v_add_u32 v3, v3, v14
                    v_lshrrev_b32 v4, 2, v2
                    v_lshl_add_u32 v3, v4, 10, v3
                    v_and_b32 v4, 1, v2
                    v_lshl_add_u32 v3, v4, 9, v3
                    v_and_b32 v4, 2, v2
                    v_lshl_add_u32 v{ad+i}, v4, 2, v3
                    """)
            else:
                a(f"""
                v_bfe_u32 v3, v1, 2, 2
                v_lshl_add_u32 v2, v3, 9, v2
                v_lshl_add_u32 v2, v7, 4, v2
                v_add_u32 v{ad+4}, {2048+28*16}, v2
                s_lshl_b32 s39, s39, 5
                v_add_u32 v2, s39, v5
                v_mul_u32_u24 v3, 2341, v2
                v_lshrrev_b32 v3, 16, v3
                v_mul_u32_u24 v4, 28, v3
                v_sub_u32 v2, v2, v4
                v_lshlrev_b32 v3, 18, v3
                v_lshl_add_u32 v3, v2, 4, v3
                v_lshl_add_u32 v{ad}, v6, 9, v3
                """)

        def reads(s):
            b = FR + 16 * (s % 2)
            g = s // 4
            if s % 4 == 0:
                a(f"s_waitcnt vmcnt({7 if g < 6 else 0})\ns_barrier")
                if g == 0: stamp(a, 2)
                if g == 3: stamp(a, 3)
                if g == 6:
                    stamp(a, 4)
                    a(f"""
                    buffer_load_dword v2, v15, s[20:23], s37 offen
                    s_cmp_lg_u32 s26, 3
                    s_cbranch_scc1 {tag}_pf
                    s_add_u32 s37, s37, {56*128}
                    buffer_load_dword v2, v15, s[20:23], s37 offen
                    {tag}_pf:
                    """)
            if s == 14:
                a(f"v_add_u32 v{RW}, {14*3072}, v{RW}")
            o = (s % 14) * 3072
            a(f"ds_read_b128 {vr(b+12,4)}, v{RX+s%4} offset:{(g%4)*4096}")
            for j in range(3):
                a(f"ds_read_b64_tr_b16 {vr(b+4*j,2)}, v{RW} offset:{o+1024*j}")
                a(f"ds_read_b64_tr_b16 {vr(b+4*j+2,2)}, v{RW} offset:{o+1024*j+256}")

        reads(0)
        for s in range(28):
            if s + 1 < 28:
                reads(s + 1)
                a("s_waitcnt lgkmcnt(7)")
            else:
                a("s_waitcnt lgkmcnt(0)")
            b = FR + 16 * (s % 2)
            x = vr(b + 12, 4)
            g = s // 4
            plan = {0: (0, 1, 2), 1: (3, 4), 2: (5, 6), 3: ()}[s % 4]
            for j, ty in enumerate(types):
                w = vr(b + 4 * j, 4)
                acc = vr(ACC + 16 * j, 16)
                c = "0" if s == 0 else acc
                if ty == "Q":
                    a(f"{MF} {acc}, {w}, {x}, {c}")
                else:
                    a(f"{MF} {acc}, {x}, {w}, {c}")
                if g + 2 < 7:
                    if s % 4 == 0 and j == 0:
                        offs()
                    if j < len(plan):
                        dma(g + 2, plan[j])
        stamp(a, 5)
        for j, ty in enumerate(types):
            ad = AD + 5 * j
            if ty == "Q":
                a(f"buffer_store_dwordx2 {vr(PC+4,2)}, v{ad+4}, s[16:19], s{58+j} offen")
            else:
                a(f"buffer_store_dwordx4 {vr(PC,4)}, v{ad+4}, s[16:19], s{58+j} offen")
        a("s_nop 7")
        for j, ty in enumerate(types):
            ad = AD + 5 * j
            acc = ACC + 16 * j
            P = FR + 8 * j
            if ty == "Q":
                for i in range(8):
                    a(f"v_pk_mul_f32 {vr(acc+2*i,2)}, {vr(acc+2*i,2)}, s[{62+2*j}:{63+2*j}]")
                for i in range(8):
                    a(f"v_cvt_pk_bf16_f32 v{P+i}, v{acc+2*i}, v{acc+2*i+1}")
                for i in range(4):
                    a(f"buffer_store_dwordx2 {vr(P+2*i,2)}, v{ad+i}, s[16:19], s{58+j} offen")
            else:
                for i in range(8):
                    a(f"v_cvt_pk_bf16_f32 v{P+i}, v{acc+2*i}, v{acc+2*i+1}")
                a(f"buffer_store_dwordx4 {vr(P,4)}, v{ad}, s[16:19], s{58+j} offen offset:2048")
                a(f"buffer_store_dwordx4 {vr(P+4,4)}, v{ad}, s[16:19], s{58+j} offen offset:3072")
        stamp(a, 6)
        stamp_out(a, 0, 7)
        a("s_endpgm")

    variant("QQQ")
    variant("QVV")
    variant("VVV")

    VEC = 114688
    KEYS = 122880
    a(f"""
K1_router:
    s_cmp_ge_u32 s29, 30
    s_cbranch_scc1 K1_end
    s_load_dwordx2 s[20:21], s[0:1], 32
    s_load_dwordx2 s[44:45], s[0:1], 64
    s_lshl_b32 s25, s34, 1
    s_add_u32 s25, s25, s29
    s_sub_u32 s25, s25, 28
    s_lshl_b32 s27, s25, 2
    s_add_u32 s27, s27, s26
    s_mul_i32 s33, s27, {32*896}
    s_mul_i32 s35, s26, 28672
    s_mov_b32 s22, 896
    s_mov_b32 s23, 0x20000
    s_mov_b32 s46, 896
    s_mov_b32 s47, 0x20000
    v_lshlrev_b32 v4, 4, v1
    s_lshl_b32 s36, s26, 11
    s_add_u32 s36, s36, {VEC}
    s_waitcnt lgkmcnt(0)
    s_mov_b32 m0, s36
    s_nop 0
    buffer_load_dwordx4 v4, s[20:23], 0 offen lds
    s_add_u32 m0, s36, 1024
    s_nop 0
    buffer_load_dwordx4 v4, s[44:47], 0 offen lds
    """)
    for g in range(7):
        for i in range(4):
            a(f"""
            s_add_u32 m0, s35, {g*4096 + i*1024 - g*128}
            s_nop 0
            buffer_load_dwordx4 v{DX+i}, s[8:11], s33 offen offset:{g*128} lds
            """)
    a(f"""
    v_and_b32 v5, 31, v1
    v_lshrrev_b32 v6, 5, v1
    """)
    xread_addr(a, RX, 35)
    a(f"""
    v_and_b32 v2, 1, v1
    v_lshlrev_b32 v2, 10, v2
    v_lshl_add_u32 v2, v6, 4, v2
    v_add_u32 v{RW}, s36, v2
    """)
    stamp(a, 1)
    for g in range(7):
        a(f"s_waitcnt vmcnt({4*(6-g)})")
        for i in range(4):
            a(f"ds_read_b128 {vr(FR+8*i,4)}, v{RX+i} offset:{g*4096}")
            a(f"ds_read_b128 {vr(FR+8*i+4,4)}, v{RW} offset:{g*128+i*32}")
        for i in range(4):
            a(f"s_waitcnt lgkmcnt({6-2*i})")
            a(f"{MF} {vr(ACC,16)}, {vr(FR+8*i+4,4)}, {vr(FR+8*i,4)}, {'0' if g==0 and i==0 else vr(ACC,16)}")
    stamp(a, 2)
    a(f"""
    s_lshl_b32 s36, s27, 5
    v_add_u32 v3, s36, v5
    v_sub_u32 v4, 2047, v3
    v_lshlrev_b32 v3, 2, v3
    s_lshl_b32 s38, s26, 7
    s_add_u32 s38, s38, {KEYS}
    v_lshl_add_u32 v7, v5, 2, s38
    s_mov_b32 s38, {WS_G}
    s_mov_b32 exec_hi, 0
    s_nop 7
    v_cvt_pk_bf16_f32 v12, v{ACC}, v{ACC}
    buffer_store_dword v{ACC+1}, v3, s[16:19], s38 offen
    v_ashrrev_i32 v14, 31, v12
    v_or_b32 v14, 0x80000000, v14
    v_xor_b32 v12, v12, v14
    v_and_b32 v12, 0xffff0000, v12
    v_or_b32 v12, v12, v4
    ds_write_b32 v7, v12
    s_mov_b32 exec_hi, -1
    v_lshlrev_b32 v7, 3, v1
    v_add_u32 v7, {KEYS}, v7
    s_waitcnt lgkmcnt(0)
    s_barrier
    s_cmp_lg_u32 s26, 0
    s_cbranch_scc1 K1_end
    ds_read_b64 v[10:11], v7
    s_waitcnt lgkmcnt(0)
    """)
    stamp(a, 3)
    bisect8(a, "K1", 10, 11)
    stamp(a, 4)
    positions8(a, 13, 14)
    a(f"""
    v_lshlrev_b32 v13, 2, v13
    v_lshlrev_b32 v14, 2, v14
    s_lshl_b32 s38, s25, 5
    s_add_u32 s38, s38, {WS_CAND}
    s_mov_b64 exec, s[50:51]
    s_cbranch_execz K1_r1
    buffer_store_dword v10, v13, s[16:19], s38 offen
K1_r1:
    s_mov_b64 exec, s[52:53]
    s_cbranch_execz K1_r2
    buffer_store_dword v11, v14, s[16:19], s38 offen
K1_r2:
    """)
    stamp(a, 5)
    stamp(a, 6)
    stamp_out(a, 0, 7)
    a("""
K1_end:
    s_endpgm
    """)
    return 124


K2_LDS = 57344 + 4096 + 1024


def gen_k2(a):
    head(a, "attn_kernel")
    Q, O, S, KV = 16, 48, 112, 176
    VO = 240
    a(f"""
    s_cmp_ge_u32 s2, {256+NMOE}
    s_cbranch_scc1 K2_end
    """)
    stamp(a, 0)
    a(f"""
    s_load_dwordx2 s[16:17], s[0:1], 88
    v_lshrrev_b32 v2, 6, v0
    v_and_b32 v1, 63, v0
    s_mov_b32 s18, {WS_SIZE}
    s_mov_b32 s19, 0x20000
    s_cmp_ge_u32 s2, 256
    v_readfirstlane_b32 s26, v2
    s_cbranch_scc1 K2_moe
    s_and_b32 s24, s2, 7
    s_lshl_b32 s24, s24, 1
    s_bfe_u32 s34, s2, 0x10003
    s_add_u32 s24, s24, s34
    s_lshr_b32 s25, s2, 4
    v_lshlrev_b32 v{VO}, 4, v1
    s_lshl_b32 s35, s24, 18
    s_add_u32 s35, s35, {WS_KV}
    s_lshl_b32 s34, s26, 16
    s_add_u32 s34, s34, s35
    s_lshl_b32 s36, s24, 6
    s_lshl_b32 s37, s25, 2
    s_add_u32 s36, s36, s37
    """)
    for i in range(4):
        a(f"""
        s_add_u32 s38, s26, {i+1}
        s_and_b32 s38, s38, 3
        s_add_u32 s38, s38, s36
        s_lshl_b32 s{44+i}, s38, 11
        """)
    a(f"""
    v_add_u32 v{VO+1}, 4096, v{VO}
    v_add_u32 v{VO+2}, 8192, v{VO}
    v_add_u32 v{VO+3}, 12288, v{VO}
    s_waitcnt lgkmcnt(0)
    """)

    def kvload(buf, part, vo, so="s34"):
        a(f"buffer_load_dwordx4 {vr(KV+16*buf+4*part,4)}, v{VO+vo}, s[16:19], {so} offen offset:{1024*part}")
    def qload(i):
        a(f"buffer_load_dwordx4 {vr(Q+8*i,4)}, v{VO}, s[16:19], s{44+i} offen")
        a(f"buffer_load_dwordx4 {vr(Q+8*i+4,4)}, v{VO}, s[16:19], s{44+i} offen offset:1024")
    qload(0)
    kvload(3, 0, 0, "s35"); kvload(3, 1, 0, "s35")
    qload(1)
    kvload(0, 0, 0); kvload(0, 1, 0)
    qload(2); qload(3)
    kvload(0, 2, 0); kvload(0, 3, 0)
    for b in (1, 2):
        for p in range(4):
            kvload(b, p, b)
    a(f"""
    s_lshl_b32 s38, s25, 2
    s_add_u32 s38, s38, s26
    s_lshl_b32 s38, s38, 12
    s_add_u32 s38, s38, s35
    v_lshlrev_b32 v8, 7, v1
    s_mov_b32 exec_hi, 0
    buffer_load_dword v9, v8, s[16:19], s38 offen
    s_mov_b32 exec_hi, -1
    v_mov_b32 v2, 0xdddddddd
    """)
    for i in range(64):
        a(f"v_mov_b32 v{O+i}, 0")
    for i in range(3):
        a(f"""
        s_add_u32 s38, s26, {i+1}
        s_and_b32 s38, s38, 3
        s_mul_i32 s38, s38, 12288
        s_add_u32 s38, s38, {(2-i)*4096}
        v_add_u32 v{4+i}, s38, v{VO}
        """)
    a(f"""
    s_mul_i32 s38, s26, 12288
    v_add_u32 v7, s38, v{VO}
    s_mov_b32 s40, 3
    v_and_b32 v3, 0x33, v1
    v_bfe_u32 v8, v1, 2, 1
    v_lshl_or_b32 v3, v8, 3, v3
    v_bfe_u32 v8, v1, 3, 1
    v_lshl_or_b32 v3, v8, 2, v3
    v_lshlrev_b32 v3, 4, v3
    """)

    def QKa(sb, buf, q):
        a(f"{MF} {vr(S+16*sb,16)}, {vr(KV+16*buf,4)}, {vr(Q+8*q,4)}, 0")
    def QKb(sb, buf, q):
        a(f"{MF} {vr(S+16*sb,16)}, {vr(KV+16*buf+4,4)}, {vr(Q+8*q+4,4)}, {vr(S+16*sb,16)}")
    def PVa(sb, buf, q):
        a(f"{SM} {vr(O+16*q,16)}, {vr(KV+16*buf+8,4)}, {vr(S+16*sb,8)}, v2")
    def PVb(sb, buf, q):
        a(f"{SM} {vr(O+16*q,16)}, {vr(KV+16*buf+12,4)}, {vr(S+16*sb+8,8)}, v2")
    def EX(sb, lo, hi):
        for i in range(lo, hi):
            a(f"v_exp_f32 v{S+16*sb+i}, v{S+16*sb+i}")
    def MAXT(sb, r):
        b = S + 16 * sb
        a(f"""
        v_max3_f32 v{b}, v{b}, v{b+1}, v{b+2}
        v_max3_f32 v{b+3}, v{b+3}, v{b+4}, v{b+5}
        v_max3_f32 v{b+6}, v{b+6}, v{b+7}, v{b+8}
        v_max3_f32 v{b+9}, v{b+9}, v{b+10}, v{b+11}
        v_max3_f32 v{b+12}, v{b+12}, v{b+13}, v{b+14}
        v_max3_f32 v{b}, v{b}, v{b+3}, v{b+15}
        v_max3_f32 v{b+6}, v{b+6}, v{b+9}, v{b+12}
        v_max_f32 v{r}, v{b}, v{b+6}
        """)
    def INS(pairs):
        a("s_mov_b32 exec_lo, 0")
        for q, r in pairs:
            a(f"v_cvt_pk_bf16_f32 v{Q+8*q+6}, -v{r}, 0")
        a("s_mov_b32 exec_lo, -1")

    stamp(a, 1)
    a("s_waitcnt vmcnt(19)")
    stamp(a, 2)
    QKa(1, 3, 0); QKb(1, 3, 0)
    a("s_waitcnt vmcnt(15)")
    QKa(2, 3, 1); QKb(2, 3, 1)
    QKa(0, 0, 0)
    a("s_nop 8")
    MAXT(1, 8)
    INS([(0, 8)])
    a("s_waitcnt vmcnt(11)")
    QKb(0, 0, 0)
    QKa(3, 3, 2); QKb(3, 3, 2)
    MAXT(2, 9)
    INS([(1, 9)])
    QKa(2, 3, 3); EX(0, 0, 4); QKb(2, 3, 3); EX(0, 4, 8)
    QKa(1, 0, 1)
    for p in range(4):
        kvload(3, p, 3)
    EX(0, 8, 12); QKb(1, 0, 1); EX(0, 12, 16)
    MAXT(3, 8); MAXT(2, 9)
    INS([(2, 8), (3, 9)])

    def slot(u, nxt, prv, extra):
        sb = u % 4
        def ex(p):
            if p in extra:
                extra[p]()
        QKa((u + 1) % 4, *nxt)
        ex(0)
        EX(sb, 0, 4)
        QKb((u + 1) % 4, *nxt)
        ex(1)
        EX(sb, 4, 8)
        PVa((u - 1) % 4, *prv)
        ex(2)
        EX(sb, 8, 12)
        PVb((u - 1) % 4, *prv)
        ex(3)
        EX(sb, 12, 16)

    slot(1, (0, 2), (0, 0), {1: lambda: a("s_waitcnt vmcnt(13)")})
    slot(2, (0, 3), (0, 1), {3: lambda: a("s_waitcnt vmcnt(9)")})
    slot(3, (1, 0), (0, 2), {3: lambda: a("s_add_u32 s34, s34, 16384")})
    a(".p2align 3\nK2_loop:")
    for v in range(16):
        u = 4 + v
        kt, q = u // 4, u % 4
        nxt = (((u + 1) // 4) % 4, (u + 1) % 4)
        prv = (((u - 1) // 4) % 4, (u - 1) % 4)
        extra = {}
        lb = (kt - 1) % 4
        if q == 0:
            extra[3] = lambda lb=lb: [kvload(lb, p, lb) for p in range(4)]
        if q == 2:
            extra[3] = lambda: a("s_waitcnt vmcnt(8)")
        if v == 15:
            extra[3] = lambda: a("s_add_u32 s34, s34, 16384\ns_sub_u32 s40, s40, 1\ns_cmp_lg_u32 s40, 0")
        slot(u, nxt, prv, extra)
    a("s_cbranch_scc1 K2_loop")
    stamp(a, 3)

    seq = [(b, q) for q in range(4) for b in (1, 2, 3)]
    def wr(q, lo, hi):
        for j in range(lo, hi):
            a(f"ds_write_b128 v{4+q}, {vr(O+16*q+4*j,4)} offset:{1024*j}")
    def rd(i, lo, hi):
        for j in range(lo, hi):
            a(f"ds_read_b128 {vr(O+16*i+4*j,4)}, v7 offset:{4096*i+1024*j}")
    a("s_waitcnt vmcnt(4)")
    for t in range(11):
        u = 52 + t
        prv = seq[t - 1] if t > 0 else (0, 3)
        extra = {}
        if t == 0:
            extra[3] = lambda: a("s_waitcnt vmcnt(0)")
        for q in range(3):
            if t == 4 + 3 * q:
                if q < 2:
                    extra[2] = lambda q=q: wr(q, 0, 1)
                    extra[3] = lambda q=q: wr(q, 1, 2)
                else:
                    extra[2] = lambda q=q: wr(q, 0, 2)
                    extra[3] = lambda q=q: wr(q, 2, 4)
            if t == 5 + 3 * q and q < 2:
                extra[0] = lambda q=q: wr(q, 2, 3)
                extra[1] = lambda q=q: wr(q, 3, 4)
        slot(u, seq[t + 1], prv, extra)
    EX(3, 0, 2)
    PVa(2, *seq[10])
    a("s_waitcnt lgkmcnt(0)\ns_barrier")
    rd(0, 0, 4)
    EX(3, 2, 6)
    PVb(2, *seq[10])
    rd(1, 0, 4)
    EX(3, 6, 10)
    PVa(3, *seq[11])
    rd(2, 0, 4)
    EX(3, 10, 16)
    a("s_waitcnt lgkmcnt(4)")
    a(f"v_pk_add_f32 {vr(O,2)}, {vr(O,2)}, {vr(O+16,2)}")
    PVb(3, *seq[11])
    for i in range(1, 8):
        a(f"v_pk_add_f32 {vr(O+2*i,2)}, {vr(O+2*i,2)}, {vr(O+16+2*i,2)}")
    a("s_waitcnt lgkmcnt(0)")
    for i in range(8):
        a(f"v_pk_add_f32 {vr(O+2*i,2)}, {vr(O+2*i,2)}, {vr(O+32+2*i,2)}")
    for i in (6, 0, 1, 2, 3, 4, 5, 7):
        a(f"v_pk_add_f32 {vr(O+2*i,2)}, {vr(O+2*i,2)}, {vr(O+48+2*i,2)}")
        if i == 6:
            a(f"v_mov_b32 v8, v{O+12}\nv_mov_b32 v9, v{O+12}")
        if i == 1:
            a("v_permlane32_swap_b32 v8, v9")
        if i == 3:
            a("v_rcp_f32 v10, v9")
    stamp(a, 4)
    T = S
    a(f"""
    v_pk_add_f32 {vr(T,2)}, {vr(O,2)}, {vr(O+2,2)}
    v_pk_add_f32 {vr(T+2,2)}, {vr(O+4,2)}, {vr(O+6,2)}
    v_pk_add_f32 {vr(T+4,2)}, {vr(O+8,2)}, {vr(O+10,2)}
    v_pk_add_f32 {vr(T+6,2)}, {vr(O+12,2)}, {vr(O+14,2)}
    s_mov_b32 s42, {f32bits(2.0**60):#x}
    v_pk_add_f32 {vr(T,2)}, {vr(T,2)}, {vr(T+2,2)}
    v_pk_add_f32 {vr(T+4,2)}, {vr(T+4,2)}, {vr(T+6,2)}
    v_cmp_gt_f32 s[44:45], s42, v9
    v_pk_add_f32 {vr(T,2)}, {vr(T,2)}, {vr(T+4,2)}
    v_cmp_gt_f32 s[46:47], s42, v10
    v_add_f32 v{T}, v{T}, v{T+1}
    s_movk_i32 s43, 0x1f8
    v_cmp_class_f32 vcc, v{T}, s43
    s_and_b64 s[44:45], s[44:45], s[46:47]
    s_lshl_b32 s38, s25, 2
    s_and_b64 s[44:45], s[44:45], vcc
    s_cmp_eq_u64 s[44:45], -1
    s_cbranch_scc0 K2_fallback
K2_finish:
    s_add_u32 s38, s38, s26
    s_lshl_b32 s38, s38, 4
    s_add_u32 s38, s38, s24
    s_lshl_b32 s38, s38, 11
    s_add_u32 s38, s38, {WS_O}
    """)
    for i in range(4):
        a(f"v_pk_mul_f32 {vr(O+2*i,2)}, {vr(O+2*i,2)}, v[10:11] op_sel_hi:[1,0]")
    for i in range(4):
        a(f"v_cvt_pk_bf16_f32 v{T+i}, v{O+2*i}, v{O+2*i+1}")
    a(f"buffer_store_dwordx4 {vr(T,4)}, v3, s[16:19], s38 offen")
    for i in range(4, 8):
        a(f"v_pk_mul_f32 {vr(O+2*i,2)}, {vr(O+2*i,2)}, v[10:11] op_sel_hi:[1,0]")
    for i in range(4, 8):
        a(f"v_cvt_pk_bf16_f32 v{T+i}, v{O+2*i}, v{O+2*i+1}")
    a(f"""
    s_mov_b32 exec_lo, 0
    v_mov_b32 v{T+6}, 0
    s_mov_b32 exec_lo, -1
    buffer_store_dwordx4 {vr(T+4,4)}, v3, s[16:19], s38 offen offset:1024
    """)
    stamp(a, 5)
    stamp_out(a, 1, 6)
    a("""
K2_end:
    s_endpgm
    """)
    Q3 = Q + 24
    a(f"""
K2_fallback:
    s_mov_b32 exec_lo, 0
    v_mov_b32 v{Q3+6}, 0
    s_mov_b32 exec_lo, -1
    s_mov_b32 s34, s35
    s_mov_b32 s40, 64
    v_mov_b32 v12, 0xff800000
K2_fb1:
    """)
    kvload(0, 0, 0); kvload(0, 1, 0)
    a("s_waitcnt vmcnt(0)")
    QKa(0, 0, 3); QKb(0, 0, 3)
    a("s_nop 15")
    for i in range(8):
        a(f"v_max3_f32 v12, v12, v{S+2*i}, v{S+2*i+1}")
    a(f"""
    s_add_u32 s34, s34, 4096
    s_sub_u32 s40, s40, 1
    s_cmp_lg_u32 s40, 0
    s_cbranch_scc1 K2_fb1
    v_mov_b32 v13, v12
    s_nop 1
    v_permlane32_swap_b32 v12, v13
    s_nop 1
    v_max_f32 v12, v12, v13
    s_mov_b32 s34, s35
    s_mov_b32 s40, 64
    """)
    for i in range(16):
        a(f"v_mov_b32 v{O+i}, 0")
    a("K2_fb2:")
    for p in range(4):
        kvload(0, p, 0)
    a("s_waitcnt vmcnt(0)")
    QKa(0, 0, 3); QKb(0, 0, 3)
    a("s_nop 15")
    for i in range(16):
        a(f"v_sub_f32 v{S+i}, v{S+i}, v12")
    EX(0, 0, 16)
    a("s_nop 1")
    PVa(0, 0, 0); PVb(0, 0, 0)
    a(f"""
    s_add_u32 s34, s34, 4096
    s_sub_u32 s40, s40, 1
    s_cmp_lg_u32 s40, 0
    s_cbranch_scc1 K2_fb2
    s_nop 15
    v_mov_b32 v8, v{O+12}
    v_mov_b32 v9, v{O+12}
    s_nop 1
    v_permlane32_swap_b32 v8, v9
    s_nop 1
    v_rcp_f32 v10, v9
    s_nop 0
    s_branch K2_finish
    """)
    gen_moe(a)
    return 244


def gen_moe(a):
    XS = 16
    WD = 48
    G, U = 80, 96
    F = 112
    HB = 57344 + 4096
    a(f"""
K2_moe:
    s_setprio 3
    s_load_dwordx2 s[8:9], s[0:1], 0
    s_load_dwordx2 s[12:13], s[0:1], 40
    s_load_dwordx2 s[20:21], s[0:1], 48
    s_load_dwordx2 s[28:29], s[0:1], 56
    s_sub_u32 s25, s2, 256
    s_and_b32 s24, s25, 7
    s_mul_i32 s24, s24, 7
    s_lshr_b32 s34, s25, 3
    s_add_u32 s24, s24, s34
    v_and_b32 v5, 31, v1
    v_lshrrev_b32 v6, 5, v1
    v_and_b32 v8, 3, v1
    v_lshrrev_b32 v7, 2, v1
    v_mul_u32_u24 v7, 3584, v7
    v_lshl_add_u32 v7, v8, 4, v7
    v_lshlrev_b32 v9, 3, v1
    s_mov_b32 s10, {2048*896}
    s_mov_b32 s11, 0x20000
    s_mov_b32 s14, {448*3584}
    s_mov_b32 s15, 0x20000
    s_mov_b32 s22, {448*3584}
    s_mov_b32 s23, 0x20000
    s_mov_b32 s30, {1792*896}
    s_mov_b32 s31, 0x20000
    s_mov_b32 s34, {WS_CAND}
    s_mul_i32 s36, s26, {7*16*3584}
    s_lshl_b32 s35, s24, 6
    s_add_u32 s36, s36, s35
    s_mul_i32 s37, s26, 14336
    s_waitcnt lgkmcnt(0)
    buffer_load_dwordx2 v[10:11], v9, s[16:19], s34 offen
    """)
    def gu(s):
        a(f"""
        s_add_u32 m0, s37, {s*2048}
        s_add_u32 s38, s36, {s*16*3584}
        buffer_load_dwordx4 v7, s[12:15], s38 offen lds
        s_add_u32 m0, s37, {s*2048+1024}
        s_nop 0
        buffer_load_dwordx4 v7, s[20:23], s38 offen lds
        """)
    gu(0)
    a(f"""
    v_lshrrev_b32 v12, 4, v1
    v_mul_u32_u24 v12, 896, v12
    v_and_b32 v13, 15, v1
    v_lshl_add_u32 v12, v13, 4, v12
    s_mul_i32 s56, s24, {32*896}
    s_lshl_b32 s39, s26, 8
    s_add_u32 s56, s56, s39
    """)
    stamp(a, 1)
    a("s_waitcnt vmcnt(0)")
    gu(1)
    stamp(a, 2)
    bisect8(a, "K2", 10, 11)
    stamp(a, 3)
    gu(2)
    positions8(a, 13, 14)
    a(f"""
    s_lshl_b32 s38, s26, 5
    s_add_u32 s38, s38, {HB+512}
    v_lshl_add_u32 v13, v13, 2, s38
    v_lshl_add_u32 v14, v14, 2, s38
    s_mov_b64 exec, s[50:51]
    ds_write_b32 v13, v10
    s_mov_b64 exec, s[52:53]
    ds_write_b32 v14, v11
    s_mov_b64 exec, -1
    v_and_b32 v13, 7, v1
    v_lshl_add_u32 v14, v13, 2, s38
    ds_read_b32 v10, v14
    s_waitcnt lgkmcnt(0)
    v_and_b32 v11, 0x7ff, v10
    v_sub_u32 v11, 2047, v11
    v_mul_u32_u24 v11, 896, v11
    v_lshl_add_u32 v11, v6, 4, v11
    s_mul_i32 s39, s26, {7*32}
    s_mov_b32 exec_lo, 0xff
    s_mov_b32 exec_hi, 0xff
    """)
    for s in range(7):
        a(f"buffer_load_dwordx4 {vr(XS+4*s,4)}, v11, s[8:11], s39 offen offset:{32*s}")
    a(f"""
    s_add_u32 s38, s25, s26
    s_cmp_lg_u32 s38, 0
    s_cbranch_scc1 K2_nosel
    v_lshlrev_b32 v14, 2, v13
    s_mov_b32 s38, {WS_SEL}
    buffer_store_dword v10, v14, s[16:19], s38 offen
K2_nosel:
    s_mov_b64 exec, -1
    v_bfe_u32 v2, v1, 2, 2
    v_lshlrev_b32 v15, 9, v6
    v_lshl_add_u32 v15, v2, 6, v15
    v_lshl_add_u32 v15, v8, 3, v15
    v_bfe_u32 v9, v1, 4, 1
    v_lshl_add_u32 v15, v9, 5, v15
    v_add_u32 v15, s37, v15
    """)
    for s in range(3, 7):
        a("s_waitcnt vmcnt(1)")
        gu(s)
    for i in range(8):
        if i % 4 == 0:
            a("s_waitcnt vmcnt(1)")
        a(f"buffer_load_dwordx4 {vr(WD+4*i,4)}, v12, s[28:31], s56 offen")
        if i < 7:
            a("s_add_u32 s56, s56, 3584")
    a("s_waitcnt vmcnt(8)")
    def rds(s):
        b = F + 8 * (s % 2)
        a(f"""
        ds_read_b64_tr_b16 {vr(b,2)}, v15 offset:{s*2048}
        ds_read_b64_tr_b16 {vr(b+2,2)}, v15 offset:{s*2048+256}
        ds_read_b64_tr_b16 {vr(b+4,2)}, v15 offset:{s*2048+1024}
        ds_read_b64_tr_b16 {vr(b+6,2)}, v15 offset:{s*2048+1280}
        """)
    rds(0)
    for s in range(7):
        b = F + 8 * (s % 2)
        if s < 6:
            rds(s + 1)
        a(f"""
        s_waitcnt lgkmcnt({4 if s < 6 else 0})
        {MF} {vr(G,16)}, {vr(b,4)}, {vr(XS+4*s,4)}, {"0" if s==0 else vr(G,16)}
        {MF} {vr(U,16)}, {vr(b+4,4)}, {vr(XS+4*s,4)}, {"0" if s==0 else vr(U,16)}
        """)
    stamp(a, 4)
    a(f"""
    v_lshlrev_b32 v12, 4, v1
    v_add_u32 v12, s37, v12
    v_lshlrev_b32 v13, 7, v5
    v_lshl_add_u32 v13, v6, 4, v13
    v_add_u32 v13, s37, v13
    s_waitcnt vmcnt(0)
    """)
    for i in range(8):
        a(f"ds_write_b128 v12, {vr(WD+4*i,4)} offset:{1024*i}")
    a(f"""
    s_mov_b32 exec_lo, 0xff
    s_mov_b32 exec_hi, 0xff
    """)
    for i in range(4):
        a(f"ds_write_b128 v13, {vr(G+4*i,4)} offset:{8192+32*i}")
        a(f"ds_write_b128 v13, {vr(U+4*i,4)} offset:{8192+1024+32*i}")
    a(f"""
    s_mov_b64 exec, -1
    v_lshlrev_b32 v13, 2, v0
    s_waitcnt lgkmcnt(0)
    s_barrier
    """)
    for w in range(4):
        a(f"ds_read_b32 v{16+w}, v13 offset:{w*14336+8192}")
        a(f"ds_read_b32 v{20+w}, v13 offset:{w*14336+8192+1024}")
    a(f"""
    v_lshlrev_b32 v15, 11, v6
    v_lshl_add_u32 v15, v2, 8, v15
    v_lshl_add_u32 v15, v8, 3, v15
    v_lshl_add_u32 v15, v9, 5, v15
    v_add_u32 v15, s37, v15
    v_lshlrev_b32 v14, 1, v0
    s_waitcnt lgkmcnt(0)
    """)
    FR = 24
    Y = 64
    def trd(t):
        for s in range(2):
            b = FR + 8 * t + 4 * s
            a(f"ds_read_b64_tr_b16 {vr(b,2)}, v15 offset:{s*4096+64*t}")
            a(f"ds_read_b64_tr_b16 {vr(b+2,2)}, v15 offset:{s*4096+64*t+1024}")
    trd(0); trd(1); trd(2)
    a(f"""
    v_add_f32 v16, v16, v17
    v_add_f32 v18, v18, v19
    v_add_f32 v20, v20, v21
    v_add_f32 v22, v22, v23
    v_add_f32 v16, v16, v18
    v_add_f32 v20, v20, v22
    v_cvt_pk_bf16_f32 v16, v16, v20
    v_and_b32 v20, 0xffff0000, v16
    v_lshlrev_b32 v16, 16, v16
    v_mul_f32 v17, {f32bits(-LOG2E):#x}, v16
    v_exp_f32 v17, v17
    v_and_b32 v13, 7, v1
    v_add_f32 v17, 1.0, v17
    v_rcp_f32 v17, v17
    v_lshlrev_b32 v13, 6, v13
    v_mul_f32 v16, v16, v17
    v_cvt_pk_bf16_f32 v16, v16, v16
    v_and_b32 v16, 0xffff0000, v16
    v_mul_f32 v16, v16, v20
    v_cvt_pk_bf16_f32 v16, v16, v16
    ds_write_b16 v14, v16 offset:{HB}
    v_lshl_add_u32 v13, v6, 4, v13
    s_waitcnt lgkmcnt(0)
    s_barrier
    ds_read_b128 v[16:19], v13 offset:{HB}
    ds_read_b128 v[20:23], v13 offset:{HB+32}
    """)
    trd(3)
    a(f"""
    v_mul_u32_u24 v13, 1792, v5
    v_lshl_add_u32 v13, v6, 4, v13
    s_mul_i32 s38, s24, 14336
    s_lshl_b32 s39, s26, 9
    s_add_u32 s38, s38, s39
    s_add_u32 s38, s38, {WS_Y}
    s_waitcnt lgkmcnt(0)
    """)
    for t in range(4):
        a(f"{MF} {vr(Y+16*t,16)}, {vr(FR+8*t,4)}, v[16:19], 0")
        a(f"{MF} {vr(Y+16*t,16)}, {vr(FR+8*t+4,4)}, v[20:23], {vr(Y+16*t,16)}")
    a(f"""
    s_mov_b32 exec_lo, 0xff
    s_mov_b32 exec_hi, 0xff
    s_nop 15
    """)
    for t in range(4):
        if t == 2:
            a("s_cmp_eq_u32 s26, 3\ns_cbranch_scc1 K2_moe_end")
        for i in range(4):
            a(f"buffer_store_dwordx4 {vr(Y+16*t+4*i,4)}, v13, s[16:19], s38 offen offset:{128*t+32*i}")
    a("K2_moe_end:")
    stamp(a, 5)
    stamp_out(a, 1, 6)
    a("s_endpgm")


K3_WB = 65536
K3_TB = K3_WB + 448 * 128
K3_LDS = K3_TB + 4 * 2560


def gen_k3(a):
    head(a, "proj_kernel")
    ACC = 16
    XR = 32
    BX = 40
    FR = 56
    YR = 96
    a(f"""
    s_lshr_b32 s29, s2, 3
    s_cmp_ge_u32 s29, 28
    s_cbranch_scc1 K3_end
    """)
    stamp(a, 0)
    a(f"""
    s_load_dwordx2 s[16:17], s[0:1], 88
    s_load_dwordx2 s[12:13], s[0:1], 16
    s_load_dwordx2 s[8:9], s[0:1], 0
    s_load_dwordx2 s[20:21], s[0:1], 72
    v_lshrrev_b32 v2, 6, v0
    v_and_b32 v1, 63, v0
    s_and_b32 s34, s2, 7
    s_mul_i32 s36, s29, 37
    v_readfirstlane_b32 s26, v2
    s_lshr_b32 s36, s36, 8
    s_mul_i32 s37, s36, 7
    s_sub_u32 s25, s29, s37
    s_lshl_b32 s24, s34, 2
    s_add_u32 s24, s24, s36
    s_mov_b32 s18, {WS_SIZE}
    s_mov_b32 s19, 0x20000
    s_mov_b32 s14, {448*896}
    s_mov_b32 s15, 0x20000
    v_lshlrev_b32 v3, 4, v1
    v_lshrrev_b32 v7, 3, v1
    v_mul_u32_u24 v7, 896, v7
    v_and_b32 v8, 7, v1
    v_bfe_u32 v9, v1, 4, 1
    v_lshlrev_b32 v4, 2, v9
    v_xor_b32 v4, v4, v8
    v_lshl_add_u32 v7, v4, 4, v7
    v_lshlrev_b32 v8, 2, v8
    s_and_b32 s27, s26, 1
    s_lshr_b32 s28, s26, 1
    s_lshl_b32 s35, s27, 15
    s_lshl_b32 s36, s28, 10
    s_add_u32 s35, s35, s36
    s_lshl_b32 s36, s24, 16
    s_add_u32 s36, s36, s35
    s_add_u32 s36, s36, {WS_O}
    s_mul_i32 s37, s26, {8*896}
    s_lshl_b32 s38, s25, 7
    s_add_u32 s37, s37, s38
    s_lshl_b32 s33, s26, 10
    s_add_u32 s33, s33, {K3_WB}
    s_mov_b32 s38, {WS_SEL}
    s_waitcnt lgkmcnt(0)
    buffer_load_dword v11, v8, s[16:19], s38 offen
    """)
    def dO(h):
        if h % 2 == 0:
            a(f"""
            s_add_u32 m0, s35, {h*2048}
            s_add_u32 s39, s36, {h*2048}
            buffer_load_dwordx4 v3, s[16:19], s39 offen lds
            buffer_load_dwordx4 v3, s[16:19], s39 offen offset:2048 lds
            """)
    def dW(n):
        a(f"""
        s_add_u32 m0, s33, {n*4096}
        s_add_u32 s38, s37, {n*32*896}
        buffer_load_dwordx4 v7, s[12:15], s38 offen lds
        """)
    stages = [(0, 4), (4, 8), (8, 12), (12, 16)]
    wneed = lambda hi: -(-28 * hi // 32)
    issue = []
    wdone = 0
    for lo, hi in stages:
        l = []
        ws_ = list(range(wdone, wneed(hi))); wdone = wneed(hi)
        os_ = list(range(lo, hi, 2))
        while ws_ or os_:
            if ws_: l.append(("W", ws_.pop(0), 1))
            if ws_: l.append(("W", ws_.pop(0), 1))
            if os_: l.append(("O", os_.pop(0), 2))
        issue.append(l)
    def do(item):
        (dW if item[0] == "W" else dO)(item[1])
    cnt = [sum(i[2] for i in l) for l in issue]
    for it in issue[0]: do(it)
    for it in issue[1]: do(it)
    a(f"""
    s_mov_b32 s10, {2048*896}
    s_mov_b32 s11, 0x20000
    s_mov_b32 s22, {2048*896}
    s_mov_b32 s23, 0x20000
    s_lshl_b32 s30, s24, 1
    s_add_u32 s30, s30, s27
    v_lshrrev_b32 v5, 2, v1
    s_lshl_b32 s38, s30, 5
    v_add_u32 v10, s38, v5
    v_mul_u32_u24 v4, 896, v10
    v_and_b32 v8, 3, v1
    v_lshl_add_u32 v4, v8, 4, v4
    s_lshl_b32 s31, s25, 7
    s_lshl_b32 s38, s28, 6
    s_add_u32 s31, s31, s38
    s_add_u32 s32, s31, {16*896}
    v_lshlrev_b32 v10, 2, v10
    s_mov_b32 s38, {WS_G}
    buffer_load_dwordx4 {vr(XR,4)}, v4, s[8:11], s31 offen
    buffer_load_dwordx4 {vr(XR+4,4)}, v4, s[8:11], s32 offen
    buffer_load_dword v12, v10, s[16:19], s38 offen
    buffer_load_dword v13, v10, s[16:19], s38 offen offset:64
    """)
    NX = 4
    stamp(a, 1)
    a(f"""
    v_lshrrev_b32 v6, 5, v1
    s_lshl_b32 s38, s27, 15
    v_add_u32 v14, s38, v3
    v_bfe_u32 v2, v1, 2, 2
    v_lshlrev_b32 v15, 7, v2
    v_lshl_add_u32 v15, v8, 3, v15
    v_lshl_add_u32 v15, v9, 5, v15
    v_lshrrev_b32 v2, 1, v2
    v_xor_b32 v2, s28, v2
    v_lshl_add_u32 v15, v2, 6, v15
    v_add_u32 v15, {K3_WB}, v15
    v_lshl_add_u32 v9, v6, 9, v15
    s_waitcnt vmcnt({cnt[0]+cnt[1]+NX})
    v_and_b32 v2, 0x7ff, v11
    v_sub_u32 v2, 2047, v2
    v_lshrrev_b32 v10, 5, v2
    v_cmp_eq_u32 vcc, s30, v10
    v_lshrrev_b32 v10, 3, v1
    v_mul_u32_u24 v10, 14336, v10
    v_and_b32 v0, 7, v1
    v_lshl_add_u32 v10, v0, 4, v10
    s_and_b32 s44, vcc_lo, 0xff
    s_lshl_b32 s45, s31, 1
    s_add_u32 s45, s45, {WS_Y}
    s_cmp_eq_u32 s44, 0
    s_cbranch_scc1 K3_noy1
    """)
    def yload():
        a(f"""
        s_ff1_i32_b32 s46, s44
        s_mul_i32 s47, s46, 1792
        s_add_u32 s47, s47, s45
        """)
        for i in range(7):
            a(f"buffer_load_dwordx4 {vr(YR+4*i,4)}, v10, s[16:19], s47 offen")
            if i < 6:
                a(f"s_add_u32 s47, s47, {8*14336}")
    yload()
    a("K3_noy1:")

    D = 4
    def reads(ks):
        b = FR + 8 * (ks % (D + 1))
        h, s = ks // 2, ks % 2
        if h % 4 == 0 and s == 0:
            g = h // 4
            if g == 3:
                yapply()
            n = {0: cnt[1] + NX, 1: cnt[2], 2: cnt[3], 3: 0}[g]
            a(f"s_waitcnt vmcnt({n})\ns_barrier")
            if g == 0: stamp(a, 2)
            if g == 3: stamp(a, 3)
        o = (28 * h + 16 * s) * 128
        a(f"""
        ds_read_b128 {vr(b,4)}, v14 offset:{1024*ks}
        ds_read_b64_tr_b16 {vr(b+4,2)}, v9 offset:{o}
        ds_read_b64_tr_b16 {vr(b+6,2)}, v{15 if s else 9} offset:{o+1024}
        """)

    def yapply():
        a(f"""
        s_cmp_eq_u32 s44, 0
        s_cbranch_scc1 K3_noy2
        s_waitcnt lgkmcnt(0)
        s_mul_i32 s48, s26, 2560
        s_add_u32 s48, s48, {K3_TB}
K3_yloop:
        v_readlane_b32 s49, v11, s46
        v_readlane_b32 s50, v2, s46
        s_bitset0_b32 s44, s46
        """)
        for i in range(1, 7):
            a(f"v_pk_add_f32 {vr(YR,2)}, {vr(YR,2)}, {vr(YR+4*i,2)}")
            a(f"v_pk_add_f32 {vr(YR+2,2)}, {vr(YR+2,2)}, {vr(YR+4*i+2,2)}")
        a(f"""
        v_add_u32 v0, s48, v3
        ds_write_b128 v0, {vr(YR,4)}
        s_lshr_b32 s51, s49, 16
        s_and_b32 s52, s51, 0x8000
        s_cmp_lg_u32 s52, 0
        s_cselect_b32 s52, s52, 0xffff
        s_xor_b32 s51, s51, s52
        s_lshl_b32 s51, s51, 16
        v_mov_b32 v{YR+24}, s51
        v_mul_f32 v{YR+24}, {f32bits(-LOG2E):#x}, v{YR+24}
        v_exp_f32 v{YR+24}, v{YR+24}
        v_lshl_add_u32 v0, v8, 5, s48
        v_add_f32 v{YR+24}, 1.0, v{YR+24}
        v_rcp_f32 v{YR+24}, v{YR+24}
        s_and_b32 s50, s50, 31
        v_cvt_pk_bf16_f32 v{YR+24}, v{YR+24}, v{YR+24}
        v_and_b32 v{YR+24}, 0xffff0000, v{YR+24}
        s_waitcnt lgkmcnt(0)
        ds_read_b128 {vr(YR,4)}, v0
        ds_read_b128 {vr(YR+4,4)}, v0 offset:16
        """)
        for p in range(1, 8):
            a(f"""
            ds_read_b128 {vr(YR+8,4)}, v0 offset:{128*p}
            ds_read_b128 {vr(YR+12,4)}, v0 offset:{128*p+16}
            s_waitcnt lgkmcnt(0)
            """)
            for j in range(4):
                a(f"v_pk_add_f32 {vr(YR+2*j,2)}, {vr(YR+2*j,2)}, {vr(YR+8+2*j,2)}")
        for j in range(4):
            r = YR + 2 * j
            a(f"""
            v_cvt_pk_bf16_f32 v{r}, v{r}, v{r+1}
            v_and_b32 v{r+1}, 0xffff0000, v{r}
            v_lshlrev_b32 v{r}, 16, v{r}
            v_pk_mul_f32 {vr(r,2)}, {vr(r,2)}, {vr(YR+24,2)} op_sel_hi:[1,0]
            v_cvt_pk_bf16_f32 v{r}, v{r}, v{r+1}
            v_and_b32 v{r+1}, 0xffff0000, v{r}
            v_lshlrev_b32 v{r}, 16, v{r}
            """)
        for half in range(2):
            a(f"""
            s_sub_u32 s51, s50, {16*half}
            v_cmp_eq_u32 vcc, s51, v5
            s_nop 3
            s_mov_b64 exec, vcc
            """)
            for j in range(4):
                x = XR + 4 * half + j
                a(f"""
                v_lshlrev_b32 v{YR+8}, 16, v{x}
                v_and_b32 v{YR+9}, 0xffff0000, v{x}
                v_pk_add_f32 {vr(YR+8,2)}, {vr(YR+8,2)}, {vr(YR+2*j,2)}
                v_cvt_pk_bf16_f32 v{x}, v{YR+8}, v{YR+9}
                """)
            a("s_mov_b64 exec, -1")
        a(f"""
        s_cmp_eq_u32 s44, 0
        s_cbranch_scc1 K3_noy2
        """)
        yload()
        a(f"""
        s_waitcnt vmcnt(0)
        s_branch K3_yloop
K3_noy2:
        """)

    for ks in range(D):
        reads(ks)
    pend = list(issue[2])
    for ks in range(32):
        if ks + D < 32:
            reads(ks + D)
        n = min(D, 31 - ks) * 3
        b = FR + 8 * (ks % (D + 1))
        a(f"s_waitcnt lgkmcnt({n})")
        a(f"{MF} {vr(ACC,16)}, {vr(b+4,4)}, {vr(b,4)}, {'0' if ks==0 else vr(ACC,16)}")
        if ks == 4:
            pend = list(issue[3])
        if ks < 8:
            k = 2 if ks % 4 < 3 else 99
            for it in pend[:k]: do(it)
            pend = pend[k:]
        if ks == 12:
            for r in (12, 13):
                a(f"""
                v_cvt_pk_bf16_f32 v{r}, v{r}, v{r}
                v_and_b32 v{r}, 0xffff0000, v{r}
                v_mul_f32 v{r}, {f32bits(-LOG2E):#x}, v{r}
                v_exp_f32 v{r}, v{r}
                """)
        if ks == 13:
            a(f"""
            v_add_f32 v12, 1.0, v12
            v_add_f32 v13, 1.0, v13
            v_rcp_f32 v12, v12
            v_rcp_f32 v13, v13
            s_nop 0
            v_cvt_pk_bf16_f32 v12, v12, v13
            v_and_b32 v13, 0xffff0000, v12
            v_lshlrev_b32 v12, 16, v12
            """)
        if ks == 14:
            a(f"""
            v_sub_f32 v124, 1.0, v12
            v_sub_f32 v125, 1.0, v13
            v_cvt_pk_bf16_f32 v124, v124, v125
            v_and_b32 v125, 0xffff0000, v124
            v_lshlrev_b32 v124, 16, v124
            """)
        if ks == 15:
            a(f"""
            s_mul_i32 s48, s26, 2560
            s_add_u32 s48, s48, {K3_TB}
            v_and_b32 v126, 31, v1
            v_mul_u32_u24 v126, 80, v126
            v_lshl_add_u32 v126, v6, 3, v126
            v_add_u32 v126, s48, v126
            v_mul_u32_u24 v127, 80, v5
            v_lshl_add_u32 v127, v8, 4, v127
            v_add_u32 v127, s48, v127
            """)
        if 22 <= ks < 30:
            i = ks - 22
            sel = "op_sel:[0,1] op_sel_hi:[1,1]" if i >= 4 else "op_sel_hi:[1,0]"
            a(f"""
            v_lshlrev_b32 v{BX+2*i}, 16, v{XR+i}
            v_and_b32 v{BX+2*i+1}, 0xffff0000, v{XR+i}
            v_pk_mul_f32 {vr(BX+2*i,2)}, {vr(BX+2*i,2)}, v[124:125] {sel}
            v_cvt_pk_bf16_f32 v{BX+2*i}, v{BX+2*i}, v{BX+2*i+1}
            v_and_b32 v{BX+2*i+1}, 0xffff0000, v{BX+2*i}
            v_lshlrev_b32 v{BX+2*i}, 16, v{BX+2*i}
            """)
    a("s_nop 11")
    stamp(a, 4)
    for i in range(4):
        a(f"""
        v_cvt_pk_bf16_f32 v{ACC+4*i}, v{ACC+4*i}, v{ACC+4*i+1}
        v_cvt_pk_bf16_f32 v{ACC+4*i+1}, v{ACC+4*i+2}, v{ACC+4*i+3}
        ds_write_b64 v126, {vr(ACC+4*i,2)} offset:{16*i}
        """)
    a(f"""
    ds_read_b128 {vr(XR,4)}, v127
    ds_read_b128 {vr(XR+4,4)}, v127 offset:{16*80}
    """)
    for half in range(2):
        a(f"s_waitcnt lgkmcnt({1-half})")
        sel = "op_sel:[0,1] op_sel_hi:[1,1]" if half else "op_sel_hi:[1,0]"
        for j in range(4):
            i = 4 * half + j
            r = ACC + 2 * i
            a(f"""
            v_lshlrev_b32 v{r}, 16, v{XR+i}
            v_and_b32 v{r+1}, 0xffff0000, v{XR+i}
            v_pk_mul_f32 {vr(r,2)}, {vr(r,2)}, v[12:13] {sel}
            v_cvt_pk_bf16_f32 v{r}, v{r}, v{r+1}
            v_and_b32 v{r+1}, 0xffff0000, v{r}
            v_lshlrev_b32 v{r}, 16, v{r}
            v_pk_add_f32 {vr(r,2)}, {vr(r,2)}, {vr(BX+2*i,2)}
            v_cvt_pk_bf16_f32 v{XR+i}, v{r}, v{r+1}
            """)
        a(f"buffer_store_dwordx4 {vr(XR+4*half,4)}, v4, s[20:23], s{31+half} offen")
    stamp(a, 5)
    stamp_out(a, 2, 6)
    a("K3_end:\ns_endpgm")
    return 128


def main(path):
    a = A()
    hdr = f"""; generated by gen2.py
; @launch kernel=qkv_kernel grid=(256,1,1) block=(256,1,1) lds={K1_LDS}
; @launch kernel=attn_kernel grid=({256+NMOE},1,1) block=(256,1,1) lds={K2_LDS}
; @launch kernel=proj_kernel grid=(224,1,1) block=(256,1,1) lds={K3_LDS}
.amdgcn_target "amdgcn-amd-amdhsa--gfx950"
.text
"""
    v1 = gen_k1(a)
    v2 = gen_k2(a)
    v3 = gen_k3(a)
    txt = hdr + a.text() + '.section .rodata,"a"\n' + kd("qkv_kernel", v1) + kd("attn_kernel", v2) + kd("proj_kernel", v3)
    open(path, "w").write(txt)


if __name__ == "__main__":
    main(sys.argv[1] if len(sys.argv) > 1 and not sys.argv[1].startswith("--") else f"cdna_kernels/{NAME}.s")
```

```python
from common import *

WS_Q = 0
WS_KV = 0x200000
WS_O = 0x600000
WS_G = 0x800000
WS_CAND = 0x802000
WS_SEL = 0x803000
WS_Y = 0x810000
WS_SIZE = 0xA40000
NMOE = 56

K1_LDS = 65536 + 28 * 3072


def xdma_addr(a, DX):
    a(f"""
    v_lshrrev_b32 v{DX}, 3, v1
    v_mul_u32_u24 v{DX}, 896, v{DX}
    v_and_b32 v2, 7, v1
    v_lshrrev_b32 v3, 4, v1
    v_xor_b32 v2, v2, v3
    v_lshl_add_u32 v{DX}, v2, 4, v{DX}
    v_xor_b32 v{DX+1}, 64, v{DX}
    v_add_u32 v{DX+2}, {16*896}, v{DX}
    v_add_u32 v{DX+1}, {8*896}, v{DX+1}
    v_add_u32 v{DX+3}, {16*896}, v{DX+1}
    """)


def xread_addr(a, RX, sbase):
    a(f"""
    v_bfe_u32 v2, v1, 1, 3
    v_xor_b32 v2, v2, v6
    v_lshlrev_b32 v3, 7, v5
    v_add_u32 v3, s{sbase}, v3
    v_lshl_add_u32 v{RX}, v2, 4, v3
    v_xor_b32 v{RX+1}, 32, v{RX}
    v_xor_b32 v{RX+2}, 64, v{RX}
    v_xor_b32 v{RX+3}, 96, v{RX}
    """)


def gen_k1(a):
    head(a, "qkv_kernel")
    DX, DW, RX, RW = 8, 12, 16, 13
    FR = 20
    ACC = 52
    AD = 100
    PC = 116
    a(f"""
    s_cmp_ge_u32 s2, 256
    s_cbranch_scc1 K1_end
    """)
    stamp(a, 0)
    a(f"""
    s_load_dwordx2 s[8:9], s[0:1], 0
    s_load_dwordx2 s[12:13], s[0:1], 8
    s_load_dwordx2 s[16:17], s[0:1], 88
    v_lshrrev_b32 v2, 6, v0
    v_and_b32 v1, 63, v0
    s_and_b32 s34, s2, 7
    s_lshr_b32 s29, s2, 3
    v_readfirstlane_b32 s26, v2
    s_mov_b32 s10, {2048*896}
    s_mov_b32 s11, 0x20000
    s_mov_b32 s18, {WS_SIZE}
    s_mov_b32 s19, 0x20000
    """)
    xdma_addr(a, DX)
    a(f"""
    s_cmp_ge_u32 s29, 28
    s_cbranch_scc1 K1_router
    s_mul_i32 s36, s29, 37
    s_lshr_b32 s36, s36, 8
    s_mul_i32 s37, s36, 7
    s_sub_u32 s37, s29, s37
    s_and_b32 s24, s34, 1
    s_mul_i32 s24, s24, 7
    s_add_u32 s24, s24, s37
    s_lshr_b32 s25, s34, 1
    s_lshl_b32 s25, s25, 2
    s_add_u32 s25, s25, s36
    s_lshl_b32 s28, s36, 1
    s_add_u32 s28, s28, s37
    s_cmp_ge_u32 s28, 7
    s_cselect_b32 s36, 7, 0
    s_sub_u32 s28, s28, s36
    s_lshl_b32 s27, s25, 2
    s_add_u32 s27, s27, s26
    s_mov_b32 s14, {448*2688}
    s_mov_b32 s15, 0x20000
    v_lshrrev_b32 v{DW}, 2, v1
    v_mul_u32_u24 v{DW}, 2688, v{DW}
    v_and_b32 v7, 3, v1
    v_lshl_add_u32 v{DW}, v7, 4, v{DW}
    s_mul_i32 s32, s24, 192
    s_mul_i32 s36, s26, {16*2688}
    s_add_u32 s32, s32, s36
    s_mul_i32 s33, s27, {32*896}
    s_lshl_b32 s35, s26, 14
    s_mul_i32 s36, s26, 3072
    s_add_u32 s36, s36, 65536
    """)

    def offs():
        a(f"""
        s_mul_i32 s30, s28, {64*2688}
        s_lshl_b32 s31, s28, 7
        s_add_u32 s30, s30, s32
        s_add_u32 s31, s31, s33
        s_add_u32 s28, s28, 1
        s_cmp_eq_u32 s28, 7
        s_cselect_b32 s28, 0, s28
        """)
    def dma(g, n):
        if n < 3:
            a(f"""
            s_add_u32 m0, s36, {g*4*3072 + n*960}
            s_nop 0
            buffer_load_dwordx4 v{DW}, s[12:15], s30 offen offset:{64*n} lds
            """)
        else:
            i = n - 3
            a(f"""
            s_add_u32 m0, s35, {(g%4)*4096 + i*1024}
            s_nop 0
            buffer_load_dwordx4 v{DX+i}, s[8:11], s31 offen lds
            """)
    offs()
    a("s_waitcnt lgkmcnt(0)")
    for n in range(7):
        dma(0, n)
    offs()
    for n in range(7):
        dma(1, n)
    stamp(a, 1)
    a(f"""
    s_load_dwordx4 s[44:47], s[0:1], 40
    s_load_dwordx2 s[48:49], s[0:1], 56
    s_load_dwordx2 s[56:57], s[0:1], 16
    v_and_b32 v5, 31, v1
    v_lshrrev_b32 v6, 5, v1
    """)
    xread_addr(a, RX, 35)
    a(f"""
    v_bfe_u32 v2, v1, 2, 2
    v_lshlrev_b32 v{RW}, 9, v6
    v_lshl_add_u32 v{RW}, v2, 6, v{RW}
    v_lshl_add_u32 v{RW}, v7, 3, v{RW}
    v_bfe_u32 v2, v1, 4, 1
    v_lshl_add_u32 v{RW}, v2, 5, v{RW}
    v_add_u32 v{RW}, 65536, v{RW}
    v_and_b32 v14, 0x13, v5
    v_bfe_u32 v2, v1, 2, 1
    v_lshl_or_b32 v14, v2, 3, v14
    v_bfe_u32 v2, v1, 3, 1
    v_lshl_or_b32 v14, v2, 2, v14
    v_lshlrev_b32 v14, 4, v14
    """)
    a(f"""
    s_waitcnt lgkmcnt(0)
    s_cmp_eq_u32 s26, 0
    s_cselect_b64 s[20:21], s[44:45], s[46:47]
    s_cmp_eq_u32 s26, 2
    s_cselect_b64 s[20:21], s[48:49], s[20:21]
    s_cmp_eq_u32 s26, 3
    s_cselect_b64 s[20:21], s[56:57], s[20:21]
    s_mov_b32 s38, {448*896}
    s_cselect_b32 s22, s38, {448*3584}
    s_mov_b32 s23, 0x20000
    v_lshrrev_b32 v15, 2, v1
    v_mul_u32_u24 v15, 3584, v15
    v_lshl_add_u32 v15, v7, 7, v15
    s_mul_i32 s37, s34, 448
    s_and_b32 s37, s37, 0xffffff80
    s_mul_i32 s38, s29, {16*3584}
    s_add_u32 s37, s37, s38
    s_cmp_lt_u32 s26, 2
    s_cbranch_scc1 K1_pfset
    v_lshlrev_b32 v15, 7, v1
    s_mul_i32 s37, s34, {224*896}
    s_mul_i32 s38, s29, {56*128}
    s_add_u32 s37, s37, s38
    s_cmp_eq_u32 s26, 2
    s_cbranch_scc1 K1_pfset
    s_mul_i32 s37, s29, {112*128}
K1_pfset:
    s_mul_i32 s38, s24, 3
    s_cmp_gt_u32 s24, 9
    s_cbranch_scc1 K1_VVV
    s_cmp_eq_u32 s24, 9
    s_cbranch_scc1 K1_QVV
    """)

    def variant(types):
        tag = "K1_" + types
        a(f"{tag}:")
        nq = types.count("Q")
        a(f"""
        s_lshl_b32 s42, s27, 11
        s_lshl_b32 s43, s27, 12
        s_add_u32 s43, s43, {WS_KV}
        """)
        if nq:
            a(f"v_mov_b32 v{PC+4}, 0x3f80\nv_mov_b32 v{PC+5}, 0")
        if nq < 3:
            a(f"""
            v_cmp_eq_u32 vcc, 0, v7
            v_mov_b32 v2, 0x3f803f80
            s_nop 0
            v_cndmask_b32 v{PC}, 0, v2, vcc
            v_cndmask_b32 v{PC+1}, 0, v2, vcc
            v_cndmask_b32 v{PC+2}, 0, v2, vcc
            v_cndmask_b32 v{PC+3}, 0, v2, vcc
            """)
        for j, ty in enumerate(types):
            ad = AD + 5 * j
            if ty == "Q":
                a(f"""
                s_add_u32 s39, s38, {j}
                s_cmp_lt_u32 s39, 14
                s_cselect_b32 s{58+j}, s42, s43
                s_cselect_b32 s{62+2*j}, {f32bits(QSCALE):#x}, 1.0
                s_cselect_b32 s40, 17, 18
                s_cselect_b32 s41, 0, 14
                s_mov_b32 s{63+2*j}, s{62+2*j}
                s_sub_u32 s39, s39, s41
                """)
            else:
                a(f"""
                s_add_u32 s39, s38, {j-28}
                s_mov_b32 s40, 18
                s_mov_b32 s{58+j}, s43
                """)
            a(f"""
            s_mul_i32 s41, s39, {8*147}
            s_lshr_b32 s41, s41, 10
            s_cmp_eq_u32 s39, 6
            s_cselect_b32 s44, 1, 0
            s_cmp_eq_u32 s39, 13
            s_cselect_b32 s44, 1, s44
            v_mul_u32_u24 v2, s44, v6
            v_add_u32 v2, s41, v2
            v_lshlrev_b32 v2, s40, v2
            """)
            if ty == "Q":
                a(f"""
                v_add_u32 v2, {1024+512+8}, v2
                v_add_u32 v{ad+4}, v2, v14
                s_lshl_b32 s39, s39, 3
                """)
                for i in range(4):
                    a(f"""
                    s_add_u32 s41, s39, {2*i}
                    v_add_u32 v2, s41, v6
                    v_mul_u32_u24 v3, 147, v2
                    v_lshrrev_b32 v3, 10, v3
                    v_mul_u32_u24 v4, 7, v3
                    v_sub_u32 v2, v2, v4
                    v_lshlrev_b32 v3, s40, v3
                    v_add_u32 v3, v3, v14
                    v_lshrrev_b32 v4, 2, v2
                    v_lshl_add_u32 v3, v4, 10, v3
                    v_and_b32 v4, 1, v2
                    v_lshl_add_u32 v3, v4, 9, v3
                    v_and_b32 v4, 2, v2
                    v_lshl_add_u32 v{ad+i}, v4, 2, v3
                    """)
            else:
                a(f"""
                v_bfe_u32 v3, v1, 2, 2
                v_lshl_add_u32 v2, v3, 9, v2
                v_lshl_add_u32 v2, v7, 4, v2
                v_add_u32 v{ad+4}, {2048+28*16}, v2
                s_lshl_b32 s39, s39, 5
                v_add_u32 v2, s39, v5
                v_mul_u32_u24 v3, 2341, v2
                v_lshrrev_b32 v3, 16, v3
                v_mul_u32_u24 v4, 28, v3
                v_sub_u32 v2, v2, v4
                v_lshlrev_b32 v3, 18, v3
                v_lshl_add_u32 v3, v2, 4, v3
                v_lshl_add_u32 v{ad}, v6, 9, v3
                """)

        def reads(s):
            b = FR + 16 * (s % 2)
            g = s // 4
            if s % 4 == 0:
                a(f"s_waitcnt vmcnt({7 if g < 6 else 0})\ns_barrier")
                if g == 0: stamp(a, 2)
                if g == 3: stamp(a, 3)
                if g == 6:
                    stamp(a, 4)
                    a(f"""
                    buffer_load_dword v2, v15, s[20:23], s37 offen
                    s_cmp_lg_u32 s26, 3
                    s_cbranch_scc1 {tag}_pf
                    s_add_u32 s37, s37, {56*128}
                    buffer_load_dword v2, v15, s[20:23], s37 offen
                    {tag}_pf:
                    """)
            if s == 14:
                a(f"v_add_u32 v{RW}, {14*3072}, v{RW}")
            o = (s % 14) * 3072
            a(f"ds_read_b128 {vr(b+12,4)}, v{RX+s%4} offset:{(g%4)*4096}")
            for j in range(3):
                a(f"ds_read_b64_tr_b16 {vr(b+4*j,2)}, v{RW} offset:{o+1024*j}")
                a(f"ds_read_b64_tr_b16 {vr(b+4*j+2,2)}, v{RW} offset:{o+1024*j+256}")

        reads(0)
        for s in range(28):
            if s + 1 < 28:
                reads(s + 1)
                a("s_waitcnt lgkmcnt(7)")
            else:
                a("s_waitcnt lgkmcnt(0)")
            b = FR + 16 * (s % 2)
            x = vr(b + 12, 4)
            g = s // 4
            plan = {0: (0, 1, 2), 1: (3, 4), 2: (5, 6), 3: ()}[s % 4]
            for j, ty in enumerate(types):
                w = vr(b + 4 * j, 4)
                acc = vr(ACC + 16 * j, 16)
                c = "0" if s == 0 else acc
                if ty == "Q":
                    a(f"{MF} {acc}, {w}, {x}, {c}")
                else:
                    a(f"{MF} {acc}, {x}, {w}, {c}")
                if g + 2 < 7:
                    if s % 4 == 0 and j == 0:
                        offs()
                    if j < len(plan):
                        dma(g + 2, plan[j])
        stamp(a, 5)
        for j, ty in enumerate(types):
            ad = AD + 5 * j
            if ty == "Q":
                a(f"buffer_store_dwordx2 {vr(PC+4,2)}, v{ad+4}, s[16:19], s{58+j} offen")
            else:
                a(f"buffer_store_dwordx4 {vr(PC,4)}, v{ad+4}, s[16:19], s{58+j} offen")
        a("s_nop 7")
        for j, ty in enumerate(types):
            ad = AD + 5 * j
            acc = ACC + 16 * j
            P = FR + 8 * j
            if ty == "Q":
                for i in range(8):
                    a(f"v_pk_mul_f32 {vr(acc+2*i,2)}, {vr(acc+2*i,2)}, s[{62+2*j}:{63+2*j}]")
                for i in range(8):
                    a(f"v_cvt_pk_bf16_f32 v{P+i}, v{acc+2*i}, v{acc+2*i+1}")
                for i in range(4):
                    a(f"buffer_store_dwordx2 {vr(P+2*i,2)}, v{ad+i}, s[16:19], s{58+j} offen")
            else:
                for i in range(8):
                    a(f"v_cvt_pk_bf16_f32 v{P+i}, v{acc+2*i}, v{acc+2*i+1}")
                a(f"buffer_store_dwordx4 {vr(P,4)}, v{ad}, s[16:19], s{58+j} offen offset:2048")
                a(f"buffer_store_dwordx4 {vr(P+4,4)}, v{ad}, s[16:19], s{58+j} offen offset:3072")
        stamp(a, 6)
        stamp_out(a, 0, 7)
        a("s_endpgm")

    variant("QQQ")
    variant("QVV")
    variant("VVV")

    VEC = 114688
    KEYS = 122880
    a(f"""
K1_router:
    s_cmp_ge_u32 s29, 30
    s_cbranch_scc1 K1_spare
    s_load_dwordx2 s[20:21], s[0:1], 32
    s_load_dwordx2 s[44:45], s[0:1], 64
    s_lshl_b32 s25, s34, 1
    s_add_u32 s25, s25, s29
    s_sub_u32 s25, s25, 28
    s_lshl_b32 s27, s25, 2
    s_add_u32 s27, s27, s26
    s_mul_i32 s33, s27, {32*896}
    s_mul_i32 s35, s26, 28672
    s_mov_b32 s22, 896
    s_mov_b32 s23, 0x20000
    s_mov_b32 s46, 896
    s_mov_b32 s47, 0x20000
    v_lshlrev_b32 v4, 4, v1
    s_lshl_b32 s36, s26, 11
    s_add_u32 s36, s36, {VEC}
    s_waitcnt lgkmcnt(0)
    s_mov_b32 m0, s36
    s_nop 0
    buffer_load_dwordx4 v4, s[20:23], 0 offen lds
    s_add_u32 m0, s36, 1024
    s_nop 0
    buffer_load_dwordx4 v4, s[44:47], 0 offen lds
    """)
    for g in range(7):
        for i in range(4):
            a(f"""
            s_add_u32 m0, s35, {g*4096 + i*1024 - g*128}
            s_nop 0
            buffer_load_dwordx4 v{DX+i}, s[8:11], s33 offen offset:{g*128} lds
            """)
    a(f"""
    v_and_b32 v5, 31, v1
    v_lshrrev_b32 v6, 5, v1
    """)
    xread_addr(a, RX, 35)
    a(f"""
    v_and_b32 v2, 1, v1
    v_lshlrev_b32 v2, 10, v2
    v_lshl_add_u32 v2, v6, 4, v2
    v_add_u32 v{RW}, s36, v2
    """)
    stamp(a, 1)
    for g in range(7):
        a(f"s_waitcnt vmcnt({4*(6-g)})")
        for i in range(4):
            a(f"ds_read_b128 {vr(FR+8*i,4)}, v{RX+i} offset:{g*4096}")
            a(f"ds_read_b128 {vr(FR+8*i+4,4)}, v{RW} offset:{g*128+i*32}")
        for i in range(4):
            a(f"s_waitcnt lgkmcnt({6-2*i})")
            a(f"{MF} {vr(ACC,16)}, {vr(FR+8*i+4,4)}, {vr(FR+8*i,4)}, {'0' if g==0 and i==0 else vr(ACC,16)}")
    stamp(a, 2)
    a(f"""
    s_lshl_b32 s36, s27, 5
    v_add_u32 v3, s36, v5
    v_sub_u32 v4, 2047, v3
    v_lshlrev_b32 v3, 2, v3
    s_lshl_b32 s38, s26, 7
    s_add_u32 s38, s38, {KEYS}
    v_lshl_add_u32 v7, v5, 2, s38
    s_mov_b32 s38, {WS_G}
    s_mov_b32 exec_hi, 0
    s_nop 7
    v_cvt_pk_bf16_f32 v12, v{ACC}, v{ACC}
    buffer_store_dword v{ACC+1}, v3, s[16:19], s38 offen
    v_ashrrev_i32 v14, 31, v12
    v_or_b32 v14, 0x80000000, v14
    v_xor_b32 v12, v12, v14
    v_and_b32 v12, 0xffff0000, v12
    v_or_b32 v12, v12, v4
    ds_write_b32 v7, v12
    s_mov_b32 exec_hi, -1
    v_lshlrev_b32 v7, 3, v1
    v_add_u32 v7, {KEYS}, v7
    s_waitcnt lgkmcnt(0)
    s_barrier
    s_cmp_lg_u32 s26, 0
    s_cbranch_scc1 K1_end
    ds_read_b64 v[10:11], v7
    s_waitcnt lgkmcnt(0)
    """)
    stamp(a, 3)
    bisect8(a, "K1", 10, 11)
    stamp(a, 4)
    positions8(a, 13, 14)
    a(f"""
    v_lshlrev_b32 v13, 2, v13
    v_lshlrev_b32 v14, 2, v14
    s_lshl_b32 s38, s25, 5
    s_add_u32 s38, s38, {WS_CAND}
    s_mov_b64 exec, s[50:51]
    s_cbranch_execz K1_r1
    buffer_store_dword v10, v13, s[16:19], s38 offen
K1_r1:
    s_mov_b64 exec, s[52:53]
    s_cbranch_execz K1_r2
    buffer_store_dword v11, v14, s[16:19], s38 offen
K1_r2:
    """)
    stamp(a, 5)
    stamp(a, 6)
    stamp_out(a, 0, 7)
    a("""
K1_end:
    s_endpgm
K1_spare:
    """)
    if "--pfcode" in sys.argv:
        a(f"""
        s_getpc_b64 s[40:41]
K1_pc:
        s_sub_u32 s40, s40, K1_pc - qkv_kernel
        s_subb_u32 s41, s41, 0
        v_lshlrev_b32 v2, 7, v0
        v_cmp_gt_u32 vcc, TEXT_END - qkv_kernel, v2
        s_and_saveexec_b64 s[42:43], vcc
        s_cbranch_execz K1_pc2
        global_load_dword v3, v2, s[40:41]
K1_pc2:
        s_mov_b64 exec, -1
        """)
    if "--pftlb" in sys.argv:
        a(f"""
        s_load_dwordx16 s[44:59], s[0:1], 0
        s_load_dwordx8 s[60:67], s[0:1], 64
        v_mov_b32 v2, 0
        v_lshlrev_b32 v4, 20, v1
        s_waitcnt lgkmcnt(0)
        s_mov_b64 exec, 1
        global_load_dword v3, v2, s[48:49]
        global_load_dword v3, v2, s[54:55]
        global_load_dword v3, v2, s[56:57]
        global_load_dword v3, v2, s[58:59]
        global_load_dword v3, v2, s[62:63]
        s_mov_b64 exec, 0x3ff
        global_load_dword v3, v4, s[66:67] offset:128
        """)
    a("s_endpgm")
    return 124


K2_LDS = 57344 + 4096 + 1024


def gen_k2(a):
    head(a, "attn_kernel")
    Q, O, S, KV = 16, 48, 112, 176
    VO = 240
    a(f"""
    s_cmp_ge_u32 s2, {256+NMOE}
    s_cbranch_scc1 K2_end
    """)
    stamp(a, 0)
    a(f"""
    s_load_dwordx2 s[16:17], s[0:1], 88
    v_lshrrev_b32 v2, 6, v0
    v_and_b32 v1, 63, v0
    s_mov_b32 s18, {WS_SIZE}
    s_mov_b32 s19, 0x20000
    s_cmp_ge_u32 s2, 256
    v_readfirstlane_b32 s26, v2
    s_cbranch_scc1 K2_moe
    s_and_b32 s24, s2, 7
    s_lshl_b32 s24, s24, 1
    s_bfe_u32 s34, s2, 0x10003
    s_add_u32 s24, s24, s34
    s_lshr_b32 s25, s2, 4
    v_lshlrev_b32 v{VO}, 4, v1
    s_lshl_b32 s35, s24, 18
    s_add_u32 s35, s35, {WS_KV}
    s_lshl_b32 s34, s26, 16
    s_add_u32 s34, s34, s35
    s_lshl_b32 s36, s24, 6
    s_lshl_b32 s37, s25, 2
    s_add_u32 s36, s36, s37
    """)
    for i in range(4):
        a(f"""
        s_add_u32 s38, s26, {i+1}
        s_and_b32 s38, s38, 3
        s_add_u32 s38, s38, s36
        s_lshl_b32 s{44+i}, s38, 11
        """)
    a(f"""
    v_add_u32 v{VO+1}, 4096, v{VO}
    v_add_u32 v{VO+2}, 8192, v{VO}
    v_add_u32 v{VO+3}, 12288, v{VO}
    s_waitcnt lgkmcnt(0)
    """)

    def kvload(buf, part, vo, so="s34"):
        a(f"buffer_load_dwordx4 {vr(KV+16*buf+4*part,4)}, v{VO+vo}, s[16:19], {so} offen offset:{1024*part}")
    def qload(i):
        a(f"buffer_load_dwordx4 {vr(Q+8*i,4)}, v{VO}, s[16:19], s{44+i} offen")
        a(f"buffer_load_dwordx4 {vr(Q+8*i+4,4)}, v{VO}, s[16:19], s{44+i} offen offset:1024")
    qload(0)
    kvload(3, 0, 0, "s35"); kvload(3, 1, 0, "s35")
    qload(1)
    kvload(0, 0, 0); kvload(0, 1, 0)
    qload(2); qload(3)
    kvload(0, 2, 0); kvload(0, 3, 0)
    for b in (1, 2):
        for p in range(4):
            kvload(b, p, b)
    a(f"""
    s_lshl_b32 s38, s25, 2
    s_add_u32 s38, s38, s26
    s_lshl_b32 s38, s38, 12
    s_add_u32 s38, s38, s35
    v_lshlrev_b32 v8, 7, v1
    s_mov_b32 exec_hi, 0
    buffer_load_dword v9, v8, s[16:19], s38 offen
    s_mov_b32 exec_hi, -1
    v_mov_b32 v2, 0xdddddddd
    """)
    for i in range(64):
        a(f"v_mov_b32 v{O+i}, 0")
    for i in range(3):
        a(f"""
        s_add_u32 s38, s26, {i+1}
        s_and_b32 s38, s38, 3
        s_mul_i32 s38, s38, 12288
        s_add_u32 s38, s38, {(2-i)*4096}
        v_add_u32 v{4+i}, s38, v{VO}
        """)
    a(f"""
    s_mul_i32 s38, s26, 12288
    v_add_u32 v7, s38, v{VO}
    s_mov_b32 s40, 3
    v_and_b32 v3, 0x33, v1
    v_bfe_u32 v8, v1, 2, 1
    v_lshl_or_b32 v3, v8, 3, v3
    v_bfe_u32 v8, v1, 3, 1
    v_lshl_or_b32 v3, v8, 2, v3
    v_lshlrev_b32 v3, 4, v3
    """)

    def QKa(sb, buf, q):
        a(f"{MF} {vr(S+16*sb,16)}, {vr(KV+16*buf,4)}, {vr(Q+8*q,4)}, 0")
    def QKb(sb, buf, q):
        a(f"{MF} {vr(S+16*sb,16)}, {vr(KV+16*buf+4,4)}, {vr(Q+8*q+4,4)}, {vr(S+16*sb,16)}")
    def PVa(sb, buf, q):
        a(f"{SM} {vr(O+16*q,16)}, {vr(KV+16*buf+8,4)}, {vr(S+16*sb,8)}, v2")
    def PVb(sb, buf, q):
        a(f"{SM} {vr(O+16*q,16)}, {vr(KV+16*buf+12,4)}, {vr(S+16*sb+8,8)}, v2")
    def EX(sb, lo, hi):
        for i in range(lo, hi):
            a(f"v_exp_f32 v{S+16*sb+i}, v{S+16*sb+i}")
    def MAXT(sb, r):
        b = S + 16 * sb
        a(f"""
        v_max3_f32 v{b}, v{b}, v{b+1}, v{b+2}
        v_max3_f32 v{b+3}, v{b+3}, v{b+4}, v{b+5}
        v_max3_f32 v{b+6}, v{b+6}, v{b+7}, v{b+8}
        v_max3_f32 v{b+9}, v{b+9}, v{b+10}, v{b+11}
        v_max3_f32 v{b+12}, v{b+12}, v{b+13}, v{b+14}
        v_max3_f32 v{b}, v{b}, v{b+3}, v{b+15}
        v_max3_f32 v{b+6}, v{b+6}, v{b+9}, v{b+12}
        v_max_f32 v{r}, v{b}, v{b+6}
        """)
    def INS(pairs):
        a("s_mov_b32 exec_lo, 0")
        for q, r in pairs:
            a(f"v_cvt_pk_bf16_f32 v{Q+8*q+6}, -v{r}, 0")
        a("s_mov_b32 exec_lo, -1")

    stamp(a, 1)
    a("s_waitcnt vmcnt(19)")
    stamp(a, 2)
    QKa(1, 3, 0); QKb(1, 3, 0)
    a("s_waitcnt vmcnt(15)")
    QKa(2, 3, 1); QKb(2, 3, 1)
    QKa(0, 0, 0)
    a("s_nop 8")
    MAXT(1, 8)
    INS([(0, 8)])
    a("s_waitcnt vmcnt(11)")
    QKb(0, 0, 0)
    QKa(3, 3, 2); QKb(3, 3, 2)
    MAXT(2, 9)
    INS([(1, 9)])
    QKa(2, 3, 3); EX(0, 0, 4); QKb(2, 3, 3); EX(0, 4, 8)
    QKa(1, 0, 1)
    for p in range(4):
        kvload(3, p, 3)
    EX(0, 8, 12); QKb(1, 0, 1); EX(0, 12, 16)
    MAXT(3, 8); MAXT(2, 9)
    INS([(2, 8), (3, 9)])

    def slot(u, nxt, prv, extra):
        sb = u % 4
        def ex(p):
            if p in extra:
                extra[p]()
        QKa((u + 1) % 4, *nxt)
        ex(0)
        EX(sb, 0, 4)
        QKb((u + 1) % 4, *nxt)
        ex(1)
        EX(sb, 4, 8)
        PVa((u - 1) % 4, *prv)
        ex(2)
        EX(sb, 8, 12)
        PVb((u - 1) % 4, *prv)
        ex(3)
        EX(sb, 12, 16)

    slot(1, (0, 2), (0, 0), {1: lambda: a("s_waitcnt vmcnt(13)")})
    slot(2, (0, 3), (0, 1), {3: lambda: a("s_waitcnt vmcnt(9)")})
    slot(3, (1, 0), (0, 2), {3: lambda: a("s_add_u32 s34, s34, 16384")})
    a(".p2align 3\nK2_loop:")
    for v in range(16):
        u = 4 + v
        kt, q = u // 4, u % 4
        nxt = (((u + 1) // 4) % 4, (u + 1) % 4)
        prv = (((u - 1) // 4) % 4, (u - 1) % 4)
        extra = {}
        lb = (kt - 1) % 4
        if q == 0:
            extra[3] = lambda lb=lb: [kvload(lb, p, lb) for p in range(4)]
        if q == 2:
            extra[3] = lambda: a("s_waitcnt vmcnt(8)")
        if v == 15:
            extra[3] = lambda: a("s_add_u32 s34, s34, 16384\ns_sub_u32 s40, s40, 1\ns_cmp_lg_u32 s40, 0")
        slot(u, nxt, prv, extra)
    a("s_cbranch_scc1 K2_loop")
    stamp(a, 3)

    seq = [(b, q) for q in range(4) for b in (1, 2, 3)]
    def wr(q, lo, hi):
        for j in range(lo, hi):
            a(f"ds_write_b128 v{4+q}, {vr(O+16*q+4*j,4)} offset:{1024*j}")
    def rd(i, lo, hi):
        for j in range(lo, hi):
            a(f"ds_read_b128 {vr(O+16*i+4*j,4)}, v7 offset:{4096*i+1024*j}")
    a("s_waitcnt vmcnt(4)")
    for t in range(11):
        u = 52 + t
        prv = seq[t - 1] if t > 0 else (0, 3)
        extra = {}
        if t == 0:
            extra[3] = lambda: a("s_waitcnt vmcnt(0)")
        for q in range(3):
            if t == 4 + 3 * q:
                if q < 2:
                    extra[2] = lambda q=q: wr(q, 0, 1)
                    extra[3] = lambda q=q: wr(q, 1, 2)
                else:
                    extra[2] = lambda q=q: wr(q, 0, 2)
                    extra[3] = lambda q=q: wr(q, 2, 4)
            if t == 5 + 3 * q and q < 2:
                extra[0] = lambda q=q: wr(q, 2, 3)
                extra[1] = lambda q=q: wr(q, 3, 4)
        slot(u, seq[t + 1], prv, extra)
    EX(3, 0, 2)
    PVa(2, *seq[10])
    a("s_waitcnt lgkmcnt(0)\ns_barrier")
    rd(0, 0, 4)
    EX(3, 2, 6)
    PVb(2, *seq[10])
    rd(1, 0, 4)
    EX(3, 6, 10)
    PVa(3, *seq[11])
    rd(2, 0, 4)
    EX(3, 10, 16)
    a("s_waitcnt lgkmcnt(4)")
    a(f"v_pk_add_f32 {vr(O,2)}, {vr(O,2)}, {vr(O+16,2)}")
    PVb(3, *seq[11])
    for i in range(1, 8):
        a(f"v_pk_add_f32 {vr(O+2*i,2)}, {vr(O+2*i,2)}, {vr(O+16+2*i,2)}")
    a("s_waitcnt lgkmcnt(0)")
    for i in range(8):
        a(f"v_pk_add_f32 {vr(O+2*i,2)}, {vr(O+2*i,2)}, {vr(O+32+2*i,2)}")
    for i in (6, 0, 1, 2, 3, 4, 5, 7):
        a(f"v_pk_add_f32 {vr(O+2*i,2)}, {vr(O+2*i,2)}, {vr(O+48+2*i,2)}")
        if i == 6:
            a(f"v_mov_b32 v8, v{O+12}\nv_mov_b32 v9, v{O+12}")
        if i == 1:
            a("v_permlane32_swap_b32 v8, v9")
        if i == 3:
            a("v_rcp_f32 v10, v9")
    stamp(a, 4)
    T = S
    a(f"""
    v_pk_add_f32 {vr(T,2)}, {vr(O,2)}, {vr(O+2,2)}
    v_pk_add_f32 {vr(T+2,2)}, {vr(O+4,2)}, {vr(O+6,2)}
    v_pk_add_f32 {vr(T+4,2)}, {vr(O+8,2)}, {vr(O+10,2)}
    v_pk_add_f32 {vr(T+6,2)}, {vr(O+12,2)}, {vr(O+14,2)}
    s_mov_b32 s42, {f32bits(2.0**60):#x}
    v_pk_add_f32 {vr(T,2)}, {vr(T,2)}, {vr(T+2,2)}
    v_pk_add_f32 {vr(T+4,2)}, {vr(T+4,2)}, {vr(T+6,2)}
    v_cmp_gt_f32 s[44:45], s42, v9
    v_pk_add_f32 {vr(T,2)}, {vr(T,2)}, {vr(T+4,2)}
    v_cmp_gt_f32 s[46:47], s42, v10
    v_add_f32 v{T}, v{T}, v{T+1}
    s_movk_i32 s43, 0x1f8
    v_cmp_class_f32 vcc, v{T}, s43
    s_and_b64 s[44:45], s[44:45], s[46:47]
    s_lshl_b32 s38, s25, 2
    s_and_b64 s[44:45], s[44:45], vcc
    s_cmp_eq_u64 s[44:45], -1
    s_cbranch_scc0 K2_fallback
K2_finish:
    s_add_u32 s38, s38, s26
    s_lshl_b32 s38, s38, 4
    s_add_u32 s38, s38, s24
    s_lshl_b32 s38, s38, 11
    s_add_u32 s38, s38, {WS_O}
    """)
    for i in range(4):
        a(f"v_pk_mul_f32 {vr(O+2*i,2)}, {vr(O+2*i,2)}, v[10:11] op_sel_hi:[1,0]")
    for i in range(4):
        a(f"v_cvt_pk_bf16_f32 v{T+i}, v{O+2*i}, v{O+2*i+1}")
    a(f"buffer_store_dwordx4 {vr(T,4)}, v3, s[16:19], s38 offen")
    for i in range(4, 8):
        a(f"v_pk_mul_f32 {vr(O+2*i,2)}, {vr(O+2*i,2)}, v[10:11] op_sel_hi:[1,0]")
    for i in range(4, 8):
        a(f"v_cvt_pk_bf16_f32 v{T+i}, v{O+2*i}, v{O+2*i+1}")
    a(f"""
    s_mov_b32 exec_lo, 0
    v_mov_b32 v{T+6}, 0
    s_mov_b32 exec_lo, -1
    buffer_store_dwordx4 {vr(T+4,4)}, v3, s[16:19], s38 offen offset:1024
    """)
    stamp(a, 5)
    stamp_out(a, 1, 6)
    a("""
K2_end:
    s_endpgm
    """)
    Q3 = Q + 24
    a(f"""
K2_fallback:
    s_mov_b32 exec_lo, 0
    v_mov_b32 v{Q3+6}, 0
    s_mov_b32 exec_lo, -1
    s_mov_b32 s34, s35
    s_mov_b32 s40, 64
    v_mov_b32 v12, 0xff800000
K2_fb1:
    """)
    kvload(0, 0, 0); kvload(0, 1, 0)
    a("s_waitcnt vmcnt(0)")
    QKa(0, 0, 3); QKb(0, 0, 3)
    a("s_nop 15")
    for i in range(8):
        a(f"v_max3_f32 v12, v12, v{S+2*i}, v{S+2*i+1}")
    a(f"""
    s_add_u32 s34, s34, 4096
    s_sub_u32 s40, s40, 1
    s_cmp_lg_u32 s40, 0
    s_cbranch_scc1 K2_fb1
    v_mov_b32 v13, v12
    s_nop 1
    v_permlane32_swap_b32 v12, v13
    s_nop 1
    v_max_f32 v12, v12, v13
    s_mov_b32 s34, s35
    s_mov_b32 s40, 64
    """)
    for i in range(16):
        a(f"v_mov_b32 v{O+i}, 0")
    a("K2_fb2:")
    for p in range(4):
        kvload(0, p, 0)
    a("s_waitcnt vmcnt(0)")
    QKa(0, 0, 3); QKb(0, 0, 3)
    a("s_nop 15")
    for i in range(16):
        a(f"v_sub_f32 v{S+i}, v{S+i}, v12")
    EX(0, 0, 16)
    a("s_nop 1")
    PVa(0, 0, 0); PVb(0, 0, 0)
    a(f"""
    s_add_u32 s34, s34, 4096
    s_sub_u32 s40, s40, 1
    s_cmp_lg_u32 s40, 0
    s_cbranch_scc1 K2_fb2
    s_nop 15
    v_mov_b32 v8, v{O+12}
    v_mov_b32 v9, v{O+12}
    s_nop 1
    v_permlane32_swap_b32 v8, v9
    s_nop 1
    v_rcp_f32 v10, v9
    s_nop 0
    s_branch K2_finish
    """)
    gen_moe(a)
    return 244


def gen_moe(a):
    XS = 16
    WD = 48
    G, U = 80, 96
    F = 112
    HB = 57344 + 4096
    a(f"""
K2_moe:
    s_setprio 3
    s_load_dwordx2 s[8:9], s[0:1], 0
    s_load_dwordx2 s[12:13], s[0:1], 40
    s_load_dwordx2 s[20:21], s[0:1], 48
    s_load_dwordx2 s[28:29], s[0:1], 56
    s_sub_u32 s25, s2, 256
    s_and_b32 s24, s25, 7
    s_mul_i32 s24, s24, 7
    s_lshr_b32 s34, s25, 3
    s_add_u32 s24, s24, s34
    v_and_b32 v5, 31, v1
    v_lshrrev_b32 v6, 5, v1
    v_and_b32 v8, 3, v1
    v_lshrrev_b32 v7, 2, v1
    v_mul_u32_u24 v7, 3584, v7
    v_lshl_add_u32 v7, v8, 4, v7
    v_lshlrev_b32 v9, 3, v1
    s_mov_b32 s10, {2048*896}
    s_mov_b32 s11, 0x20000
    s_mov_b32 s14, {448*3584}
    s_mov_b32 s15, 0x20000
    s_mov_b32 s22, {448*3584}
    s_mov_b32 s23, 0x20000
    s_mov_b32 s30, {1792*896}
    s_mov_b32 s31, 0x20000
    s_mov_b32 s34, {WS_CAND}
    s_mul_i32 s36, s26, {7*16*3584}
    s_lshl_b32 s35, s24, 6
    s_add_u32 s36, s36, s35
    s_mul_i32 s37, s26, 14336
    s_waitcnt lgkmcnt(0)
    buffer_load_dwordx2 v[10:11], v9, s[16:19], s34 offen
    """)
    def gu(s):
        a(f"""
        s_add_u32 m0, s37, {s*2048}
        s_add_u32 s38, s36, {s*16*3584}
        buffer_load_dwordx4 v7, s[12:15], s38 offen lds
        s_add_u32 m0, s37, {s*2048+1024}
        s_nop 0
        buffer_load_dwordx4 v7, s[20:23], s38 offen lds
        """)
    gu(0)
    a(f"""
    v_lshrrev_b32 v12, 4, v1
    v_mul_u32_u24 v12, 896, v12
    v_and_b32 v13, 15, v1
    v_lshl_add_u32 v12, v13, 4, v12
    s_mul_i32 s56, s24, {32*896}
    s_lshl_b32 s39, s26, 8
    s_add_u32 s56, s56, s39
    """)
    stamp(a, 1)
    a("s_waitcnt vmcnt(0)")
    gu(1)
    stamp(a, 2)
    bisect8(a, "K2", 10, 11)
    stamp(a, 3)
    gu(2)
    positions8(a, 13, 14)
    a(f"""
    s_lshl_b32 s38, s26, 5
    s_add_u32 s38, s38, {HB+512}
    v_lshl_add_u32 v13, v13, 2, s38
    v_lshl_add_u32 v14, v14, 2, s38
    s_mov_b64 exec, s[50:51]
    ds_write_b32 v13, v10
    s_mov_b64 exec, s[52:53]
    ds_write_b32 v14, v11
    s_mov_b64 exec, -1
    v_and_b32 v13, 7, v1
    v_lshl_add_u32 v14, v13, 2, s38
    ds_read_b32 v10, v14
    s_waitcnt lgkmcnt(0)
    v_and_b32 v11, 0x7ff, v10
    v_sub_u32 v11, 2047, v11
    v_mul_u32_u24 v11, 896, v11
    v_lshl_add_u32 v11, v6, 4, v11
    s_mul_i32 s39, s26, {7*32}
    s_mov_b32 exec_lo, 0xff
    s_mov_b32 exec_hi, 0xff
    """)
    for s in range(7):
        a(f"buffer_load_dwordx4 {vr(XS+4*s,4)}, v11, s[8:11], s39 offen offset:{32*s}")
    a(f"""
    s_add_u32 s38, s25, s26
    s_cmp_lg_u32 s38, 0
    s_cbranch_scc1 K2_nosel
    v_lshlrev_b32 v14, 2, v13
    s_mov_b32 s38, {WS_SEL}
    buffer_store_dword v10, v14, s[16:19], s38 offen
K2_nosel:
    s_mov_b64 exec, -1
    v_bfe_u32 v2, v1, 2, 2
    v_lshlrev_b32 v15, 9, v6
    v_lshl_add_u32 v15, v2, 6, v15
    v_lshl_add_u32 v15, v8, 3, v15
    v_bfe_u32 v9, v1, 4, 1
    v_lshl_add_u32 v15, v9, 5, v15
    v_add_u32 v15, s37, v15
    """)
    for s in range(3, 7):
        a("s_waitcnt vmcnt(1)")
        gu(s)
    for i in range(8):
        if i % 4 == 0:
            a("s_waitcnt vmcnt(1)")
        a(f"buffer_load_dwordx4 {vr(WD+4*i,4)}, v12, s[28:31], s56 offen")
        if i < 7:
            a("s_add_u32 s56, s56, 3584")
    a("s_waitcnt vmcnt(8)")
    def rds(s):
        b = F + 8 * (s % 2)
        a(f"""
        ds_read_b64_tr_b16 {vr(b,2)}, v15 offset:{s*2048}
        ds_read_b64_tr_b16 {vr(b+2,2)}, v15 offset:{s*2048+256}
        ds_read_b64_tr_b16 {vr(b+4,2)}, v15 offset:{s*2048+1024}
        ds_read_b64_tr_b16 {vr(b+6,2)}, v15 offset:{s*2048+1280}
        """)
    rds(0)
    for s in range(7):
        b = F + 8 * (s % 2)
        if s < 6:
            rds(s + 1)
        a(f"""
        s_waitcnt lgkmcnt({4 if s < 6 else 0})
        {MF} {vr(G,16)}, {vr(b,4)}, {vr(XS+4*s,4)}, {"0" if s==0 else vr(G,16)}
        {MF} {vr(U,16)}, {vr(b+4,4)}, {vr(XS+4*s,4)}, {"0" if s==0 else vr(U,16)}
        """)
    stamp(a, 4)
    a(f"""
    v_lshlrev_b32 v12, 4, v1
    v_add_u32 v12, s37, v12
    v_lshlrev_b32 v13, 7, v5
    v_lshl_add_u32 v13, v6, 4, v13
    v_add_u32 v13, s37, v13
    s_waitcnt vmcnt(0)
    """)
    for i in range(8):
        a(f"ds_write_b128 v12, {vr(WD+4*i,4)} offset:{1024*i}")
    a(f"""
    s_mov_b32 exec_lo, 0xff
    s_mov_b32 exec_hi, 0xff
    """)
    for i in range(4):
        a(f"ds_write_b128 v13, {vr(G+4*i,4)} offset:{8192+32*i}")
        a(f"ds_write_b128 v13, {vr(U+4*i,4)} offset:{8192+1024+32*i}")
    a(f"""
    s_mov_b64 exec, -1
    v_lshlrev_b32 v13, 2, v0
    s_waitcnt lgkmcnt(0)
    s_barrier
    """)
    for w in range(4):
        a(f"ds_read_b32 v{16+w}, v13 offset:{w*14336+8192}")
        a(f"ds_read_b32 v{20+w}, v13 offset:{w*14336+8192+1024}")
    a(f"""
    v_lshlrev_b32 v15, 11, v6
    v_lshl_add_u32 v15, v2, 8, v15
    v_lshl_add_u32 v15, v8, 3, v15
    v_lshl_add_u32 v15, v9, 5, v15
    v_add_u32 v15, s37, v15
    v_lshlrev_b32 v14, 1, v0
    s_waitcnt lgkmcnt(0)
    """)
    FR = 24
    Y = 64
    def trd(t):
        for s in range(2):
            b = FR + 8 * t + 4 * s
            a(f"ds_read_b64_tr_b16 {vr(b,2)}, v15 offset:{s*4096+64*t}")
            a(f"ds_read_b64_tr_b16 {vr(b+2,2)}, v15 offset:{s*4096+64*t+1024}")
    trd(0); trd(1); trd(2)
    a(f"""
    v_add_f32 v16, v16, v17
    v_add_f32 v18, v18, v19
    v_add_f32 v20, v20, v21
    v_add_f32 v22, v22, v23
    v_add_f32 v16, v16, v18
    v_add_f32 v20, v20, v22
    v_cvt_pk_bf16_f32 v16, v16, v20
    v_and_b32 v20, 0xffff0000, v16
    v_lshlrev_b32 v16, 16, v16
    v_mul_f32 v17, {f32bits(-LOG2E):#x}, v16
    v_exp_f32 v17, v17
    v_and_b32 v13, 7, v1
    v_add_f32 v17, 1.0, v17
    v_rcp_f32 v17, v17
    v_lshlrev_b32 v13, 6, v13
    v_mul_f32 v16, v16, v17
    v_cvt_pk_bf16_f32 v16, v16, v16
    v_and_b32 v16, 0xffff0000, v16
    v_mul_f32 v16, v16, v20
    v_cvt_pk_bf16_f32 v16, v16, v16
    ds_write_b16 v14, v16 offset:{HB}
    v_lshl_add_u32 v13, v6, 4, v13
    s_waitcnt lgkmcnt(0)
    s_barrier
    ds_read_b128 v[16:19], v13 offset:{HB}
    ds_read_b128 v[20:23], v13 offset:{HB+32}
    """)
    trd(3)
    a(f"""
    v_mul_u32_u24 v13, 1792, v5
    v_lshl_add_u32 v13, v6, 4, v13
    s_mul_i32 s38, s24, 14336
    s_lshl_b32 s39, s26, 9
    s_add_u32 s38, s38, s39
    s_add_u32 s38, s38, {WS_Y}
    s_waitcnt lgkmcnt(0)
    """)
    for t in range(4):
        a(f"{MF} {vr(Y+16*t,16)}, {vr(FR+8*t,4)}, v[16:19], 0")
        a(f"{MF} {vr(Y+16*t,16)}, {vr(FR+8*t+4,4)}, v[20:23], {vr(Y+16*t,16)}")
    a(f"""
    s_mov_b32 exec_lo, 0xff
    s_mov_b32 exec_hi, 0xff
    s_nop 15
    """)
    for t in range(4):
        if t == 2:
            a("s_cmp_eq_u32 s26, 3\ns_cbranch_scc1 K2_moe_end")
        for i in range(4):
            a(f"buffer_store_dwordx4 {vr(Y+16*t+4*i,4)}, v13, s[16:19], s38 offen offset:{128*t+32*i}")
    a("K2_moe_end:")
    stamp(a, 5)
    stamp_out(a, 1, 6)
    a("s_endpgm")


K3_WB = 65536
K3_TB = K3_WB + 448 * 128
K3_LDS = K3_TB + 4 * 2560


def gen_k3(a):
    head(a, "proj_kernel")
    ACC = 16
    XR = 32
    BX = 40
    FR = 56
    YR = 96
    a(f"""
    s_lshr_b32 s29, s2, 3
    s_cmp_ge_u32 s29, 28
    s_cbranch_scc1 K3_end
    """)
    stamp(a, 0)
    a(f"""
    s_load_dwordx2 s[16:17], s[0:1], 88
    s_load_dwordx2 s[12:13], s[0:1], 16
    s_load_dwordx2 s[8:9], s[0:1], 0
    s_load_dwordx2 s[20:21], s[0:1], 72
    v_lshrrev_b32 v2, 6, v0
    v_and_b32 v1, 63, v0
    s_and_b32 s34, s2, 7
    s_mul_i32 s36, s29, 37
    v_readfirstlane_b32 s26, v2
    s_lshr_b32 s36, s36, 8
    s_mul_i32 s37, s36, 7
    s_sub_u32 s25, s29, s37
    s_lshl_b32 s24, s34, 2
    s_add_u32 s24, s24, s36
    s_mov_b32 s18, {WS_SIZE}
    s_mov_b32 s19, 0x20000
    s_mov_b32 s14, {448*896}
    s_mov_b32 s15, 0x20000
    v_lshlrev_b32 v3, 4, v1
    v_lshrrev_b32 v7, 3, v1
    v_mul_u32_u24 v7, 896, v7
    v_and_b32 v8, 7, v1
    v_bfe_u32 v9, v1, 4, 1
    v_lshlrev_b32 v4, 2, v9
    v_xor_b32 v4, v4, v8
    v_lshl_add_u32 v7, v4, 4, v7
    v_lshlrev_b32 v8, 2, v8
    s_and_b32 s27, s26, 1
    s_lshr_b32 s28, s26, 1
    s_lshl_b32 s35, s27, 15
    s_lshl_b32 s36, s28, 10
    s_add_u32 s35, s35, s36
    s_lshl_b32 s36, s24, 16
    s_add_u32 s36, s36, s35
    s_add_u32 s36, s36, {WS_O}
    s_mul_i32 s37, s26, {8*896}
    s_lshl_b32 s38, s25, 7
    s_add_u32 s37, s37, s38
    s_lshl_b32 s33, s26, 10
    s_add_u32 s33, s33, {K3_WB}
    s_mov_b32 s38, {WS_SEL}
    s_waitcnt lgkmcnt(0)
    buffer_load_dword v11, v8, s[16:19], s38 offen
    """)
    def dO(h):
        if h % 2 == 0:
            a(f"""
            s_add_u32 m0, s35, {h*2048}
            s_add_u32 s39, s36, {h*2048}
            buffer_load_dwordx4 v3, s[16:19], s39 offen lds
            buffer_load_dwordx4 v3, s[16:19], s39 offen offset:2048 lds
            """)
    def dW(n):
        a(f"""
        s_add_u32 m0, s33, {n*4096}
        s_add_u32 s38, s37, {n*32*896}
        buffer_load_dwordx4 v7, s[12:15], s38 offen lds
        """)
    stages = [(0, 4), (4, 8), (8, 12), (12, 16)]
    wneed = lambda hi: -(-28 * hi // 32)
    issue = []
    wdone = 0
    for lo, hi in stages:
        l = []
        ws_ = list(range(wdone, wneed(hi))); wdone = wneed(hi)
        os_ = list(range(lo, hi, 2))
        while ws_ or os_:
            if ws_: l.append(("W", ws_.pop(0), 1))
            if ws_: l.append(("W", ws_.pop(0), 1))
            if os_: l.append(("O", os_.pop(0), 2))
        issue.append(l)
    def do(item):
        (dW if item[0] == "W" else dO)(item[1])
    cnt = [sum(i[2] for i in l) for l in issue]
    for it in issue[0]: do(it)
    for it in issue[1]: do(it)
    a(f"""
    s_mov_b32 s10, {2048*896}
    s_mov_b32 s11, 0x20000
    s_mov_b32 s22, {2048*896}
    s_mov_b32 s23, 0x20000
    s_lshl_b32 s30, s24, 1
    s_add_u32 s30, s30, s27
    v_lshrrev_b32 v5, 2, v1
    s_lshl_b32 s38, s30, 5
    v_add_u32 v10, s38, v5
    v_mul_u32_u24 v4, 896, v10
    v_and_b32 v8, 3, v1
    v_lshl_add_u32 v4, v8, 4, v4
    s_lshl_b32 s31, s25, 7
    s_lshl_b32 s38, s28, 6
    s_add_u32 s31, s31, s38
    s_add_u32 s32, s31, {16*896}
    v_lshlrev_b32 v10, 2, v10
    s_mov_b32 s38, {WS_G}
    buffer_load_dwordx4 {vr(XR,4)}, v4, s[8:11], s31 offen
    buffer_load_dwordx4 {vr(XR+4,4)}, v4, s[8:11], s32 offen
    buffer_load_dword v12, v10, s[16:19], s38 offen
    buffer_load_dword v13, v10, s[16:19], s38 offen offset:64
    """)
    NX = 4
    stamp(a, 1)
    a(f"""
    v_lshrrev_b32 v6, 5, v1
    s_lshl_b32 s38, s27, 15
    v_add_u32 v14, s38, v3
    v_bfe_u32 v2, v1, 2, 2
    v_lshlrev_b32 v15, 7, v2
    v_lshl_add_u32 v15, v8, 3, v15
    v_lshl_add_u32 v15, v9, 5, v15
    v_lshrrev_b32 v2, 1, v2
    v_xor_b32 v2, s28, v2
    v_lshl_add_u32 v15, v2, 6, v15
    v_add_u32 v15, {K3_WB}, v15
    v_lshl_add_u32 v9, v6, 9, v15
    s_waitcnt vmcnt({cnt[0]+cnt[1]+NX})
    v_and_b32 v2, 0x7ff, v11
    v_sub_u32 v2, 2047, v2
    v_lshrrev_b32 v10, 5, v2
    v_cmp_eq_u32 vcc, s30, v10
    v_lshrrev_b32 v10, 3, v1
    v_mul_u32_u24 v10, 14336, v10
    v_and_b32 v0, 7, v1
    v_lshl_add_u32 v10, v0, 4, v10
    s_and_b32 s44, vcc_lo, 0xff
    s_lshl_b32 s45, s31, 1
    s_add_u32 s45, s45, {WS_Y}
    s_cmp_eq_u32 s44, 0
    s_cbranch_scc1 K3_noy1
    """)
    def yload():
        a(f"""
        s_ff1_i32_b32 s46, s44
        s_mul_i32 s47, s46, 1792
        s_add_u32 s47, s47, s45
        """)
        for i in range(7):
            a(f"buffer_load_dwordx4 {vr(YR+4*i,4)}, v10, s[16:19], s47 offen")
            if i < 6:
                a(f"s_add_u32 s47, s47, {8*14336}")
    yload()
    a("K3_noy1:")

    D = 4
    def reads(ks):
        b = FR + 8 * (ks % (D + 1))
        h, s = ks // 2, ks % 2
        if h % 4 == 0 and s == 0:
            g = h // 4
            if g == 3:
                yapply()
            n = {0: cnt[1] + NX, 1: cnt[2], 2: cnt[3], 3: 0}[g]
            a(f"s_waitcnt vmcnt({n})\ns_barrier")
            if g == 0: stamp(a, 2)
            if g == 3: stamp(a, 3)
        o = (28 * h + 16 * s) * 128
        a(f"""
        ds_read_b128 {vr(b,4)}, v14 offset:{1024*ks}
        ds_read_b64_tr_b16 {vr(b+4,2)}, v9 offset:{o}
        ds_read_b64_tr_b16 {vr(b+6,2)}, v{15 if s else 9} offset:{o+1024}
        """)

    def yapply():
        a(f"""
        s_cmp_eq_u32 s44, 0
        s_cbranch_scc1 K3_noy2
        s_waitcnt lgkmcnt(0)
        s_mul_i32 s48, s26, 2560
        s_add_u32 s48, s48, {K3_TB}
K3_yloop:
        v_readlane_b32 s49, v11, s46
        v_readlane_b32 s50, v2, s46
        s_bitset0_b32 s44, s46
        """)
        for i in range(1, 7):
            a(f"v_pk_add_f32 {vr(YR,2)}, {vr(YR,2)}, {vr(YR+4*i,2)}")
            a(f"v_pk_add_f32 {vr(YR+2,2)}, {vr(YR+2,2)}, {vr(YR+4*i+2,2)}")
        a(f"""
        v_add_u32 v0, s48, v3
        ds_write_b128 v0, {vr(YR,4)}
        s_lshr_b32 s51, s49, 16
        s_and_b32 s52, s51, 0x8000
        s_cmp_lg_u32 s52, 0
        s_cselect_b32 s52, s52, 0xffff
        s_xor_b32 s51, s51, s52
        s_lshl_b32 s51, s51, 16
        v_mov_b32 v{YR+24}, s51
        v_mul_f32 v{YR+24}, {f32bits(-LOG2E):#x}, v{YR+24}
        v_exp_f32 v{YR+24}, v{YR+24}
        v_lshl_add_u32 v0, v8, 5, s48
        v_add_f32 v{YR+24}, 1.0, v{YR+24}
        v_rcp_f32 v{YR+24}, v{YR+24}
        s_and_b32 s50, s50, 31
        v_cvt_pk_bf16_f32 v{YR+24}, v{YR+24}, v{YR+24}
        v_and_b32 v{YR+24}, 0xffff0000, v{YR+24}
        s_waitcnt lgkmcnt(0)
        ds_read_b128 {vr(YR,4)}, v0
        ds_read_b128 {vr(YR+4,4)}, v0 offset:16
        """)
        for p in range(1, 8):
            a(f"""
            ds_read_b128 {vr(YR+8,4)}, v0 offset:{128*p}
            ds_read_b128 {vr(YR+12,4)}, v0 offset:{128*p+16}
            s_waitcnt lgkmcnt(0)
            """)
            for j in range(4):
                a(f"v_pk_add_f32 {vr(YR+2*j,2)}, {vr(YR+2*j,2)}, {vr(YR+8+2*j,2)}")
        for j in range(4):
            r = YR + 2 * j
            a(f"""
            v_cvt_pk_bf16_f32 v{r}, v{r}, v{r+1}
            v_and_b32 v{r+1}, 0xffff0000, v{r}
            v_lshlrev_b32 v{r}, 16, v{r}
            v_pk_mul_f32 {vr(r,2)}, {vr(r,2)}, {vr(YR+24,2)} op_sel_hi:[1,0]
            v_cvt_pk_bf16_f32 v{r}, v{r}, v{r+1}
            v_and_b32 v{r+1}, 0xffff0000, v{r}
            v_lshlrev_b32 v{r}, 16, v{r}
            """)
        for half in range(2):
            a(f"""
            s_sub_u32 s51, s50, {16*half}
            v_cmp_eq_u32 vcc, s51, v5
            s_nop 3
            s_mov_b64 exec, vcc
            """)
            for j in range(4):
                x = XR + 4 * half + j
                a(f"""
                v_lshlrev_b32 v{YR+8}, 16, v{x}
                v_and_b32 v{YR+9}, 0xffff0000, v{x}
                v_pk_add_f32 {vr(YR+8,2)}, {vr(YR+8,2)}, {vr(YR+2*j,2)}
                v_cvt_pk_bf16_f32 v{x}, v{YR+8}, v{YR+9}
                """)
            a("s_mov_b64 exec, -1")
        a(f"""
        s_cmp_eq_u32 s44, 0
        s_cbranch_scc1 K3_noy2
        """)
        yload()
        a(f"""
        s_waitcnt vmcnt(0)
        s_branch K3_yloop
K3_noy2:
        """)

    for ks in range(D):
        reads(ks)
    pend = list(issue[2])
    for ks in range(32):
        if ks + D < 32:
            reads(ks + D)
        n = min(D, 31 - ks) * 3
        b = FR + 8 * (ks % (D + 1))
        a(f"s_waitcnt lgkmcnt({n})")
        a(f"{MF} {vr(ACC,16)}, {vr(b+4,4)}, {vr(b,4)}, {'0' if ks==0 else vr(ACC,16)}")
        if ks == 4:
            pend = list(issue[3])
        if ks < 8:
            k = 2 if ks % 4 < 3 else 99
            for it in pend[:k]: do(it)
            pend = pend[k:]
        if ks == 12:
            for r in (12, 13):
                a(f"""
                v_cvt_pk_bf16_f32 v{r}, v{r}, v{r}
                v_and_b32 v{r}, 0xffff0000, v{r}
                v_mul_f32 v{r}, {f32bits(-LOG2E):#x}, v{r}
                v_exp_f32 v{r}, v{r}
                """)
        if ks == 13:
            a(f"""
            v_add_f32 v12, 1.0, v12
            v_add_f32 v13, 1.0, v13
            v_rcp_f32 v12, v12
            v_rcp_f32 v13, v13
            s_nop 0
            v_cvt_pk_bf16_f32 v12, v12, v13
            v_and_b32 v13, 0xffff0000, v12
            v_lshlrev_b32 v12, 16, v12
            """)
        if ks == 14:
            a(f"""
            v_sub_f32 v124, 1.0, v12
            v_sub_f32 v125, 1.0, v13
            v_cvt_pk_bf16_f32 v124, v124, v125
            v_and_b32 v125, 0xffff0000, v124
            v_lshlrev_b32 v124, 16, v124
            """)
        if ks == 15:
            a(f"""
            s_mul_i32 s48, s26, 2560
            s_add_u32 s48, s48, {K3_TB}
            v_and_b32 v126, 31, v1
            v_mul_u32_u24 v126, 80, v126
            v_lshl_add_u32 v126, v6, 3, v126
            v_add_u32 v126, s48, v126
            v_mul_u32_u24 v127, 80, v5
            v_lshl_add_u32 v127, v8, 4, v127
            v_add_u32 v127, s48, v127
            """)
        if 22 <= ks < 30:
            i = ks - 22
            sel = "op_sel:[0,1] op_sel_hi:[1,1]" if i >= 4 else "op_sel_hi:[1,0]"
            a(f"""
            v_lshlrev_b32 v{BX+2*i}, 16, v{XR+i}
            v_and_b32 v{BX+2*i+1}, 0xffff0000, v{XR+i}
            v_pk_mul_f32 {vr(BX+2*i,2)}, {vr(BX+2*i,2)}, v[124:125] {sel}
            v_cvt_pk_bf16_f32 v{BX+2*i}, v{BX+2*i}, v{BX+2*i+1}
            v_and_b32 v{BX+2*i+1}, 0xffff0000, v{BX+2*i}
            v_lshlrev_b32 v{BX+2*i}, 16, v{BX+2*i}
            """)
    a("s_nop 11")
    stamp(a, 4)
    for i in range(4):
        a(f"""
        v_cvt_pk_bf16_f32 v{ACC+4*i}, v{ACC+4*i}, v{ACC+4*i+1}
        v_cvt_pk_bf16_f32 v{ACC+4*i+1}, v{ACC+4*i+2}, v{ACC+4*i+3}
        ds_write_b64 v126, {vr(ACC+4*i,2)} offset:{16*i}
        """)
    a(f"""
    ds_read_b128 {vr(XR,4)}, v127
    ds_read_b128 {vr(XR+4,4)}, v127 offset:{16*80}
    """)
    for half in range(2):
        a(f"s_waitcnt lgkmcnt({1-half})")
        sel = "op_sel:[0,1] op_sel_hi:[1,1]" if half else "op_sel_hi:[1,0]"
        for j in range(4):
            i = 4 * half + j
            r = ACC + 2 * i
            a(f"""
            v_lshlrev_b32 v{r}, 16, v{XR+i}
            v_and_b32 v{r+1}, 0xffff0000, v{XR+i}
            v_pk_mul_f32 {vr(r,2)}, {vr(r,2)}, v[12:13] {sel}
            v_cvt_pk_bf16_f32 v{r}, v{r}, v{r+1}
            v_and_b32 v{r+1}, 0xffff0000, v{r}
            v_lshlrev_b32 v{r}, 16, v{r}
            v_pk_add_f32 {vr(r,2)}, {vr(r,2)}, {vr(BX+2*i,2)}
            v_cvt_pk_bf16_f32 v{XR+i}, v{r}, v{r+1}
            """)
        a(f"buffer_store_dwordx4 {vr(XR+4*half,4)}, v4, s[20:23], s{31+half} offen")
    stamp(a, 5)
    stamp_out(a, 2, 6)
    a("K3_end:\ns_endpgm")
    return 128


def main(path):
    a = A()
    hdr = f"""; generated by gen2.py
; @launch kernel=qkv_kernel grid=(256,1,1) block=(256,1,1) lds={K1_LDS}
; @launch kernel=attn_kernel grid=({256+NMOE},1,1) block=(256,1,1) lds={K2_LDS}
; @launch kernel=proj_kernel grid=(224,1,1) block=(256,1,1) lds={K3_LDS}
.amdgcn_target "amdgcn-amd-amdhsa--gfx950"
.text
"""
    v1 = gen_k1(a)
    v2 = gen_k2(a)
    v3 = gen_k3(a)
    a("TEXT_END:")
    txt = hdr + a.text() + '.section .rodata,"a"\n' + kd("qkv_kernel", v1) + kd("attn_kernel", v2) + kd("proj_kernel", v3)
    open(path, "w").write(txt)


if __name__ == "__main__":
    main(sys.argv[1] if len(sys.argv) > 1 and not sys.argv[1].startswith("--") else f"cdna_kernels/{NAME}.s")
```

```python
from common import *
import common

WS_EP = 0x0
WS_SEL = 0x100
WS_CAND = 0x1000
WS_GG = 0x4000
WS_F1 = 0x8000
WS_F2 = 0x10000
WS_FY = 0x30000
WS_Y = 0x38000
WS_Q = 0x100000
WS_KV = 0x300000
WS_O = 0x700000
WS_SIZE = 0xA40000
LDS = 65536 + 28 * 3072
WB = 65536
TB = WB + 448 * 128
SPIN = 1 << 17
KN = NAME + "_kernel"


def poll64(a, tag, vaddr, vd, soff):
    a(f"""
    s_mov_b32 s94, {SPIN}
{tag}:
    buffer_load_dwordx2 {vr(vd,2)}, v{vaddr}, s[16:19], {soff} offen sc1
    s_sub_u32 s94, s94, 1
    s_waitcnt vmcnt(0)
    v_cmp_ne_u64 vcc, s[68:69], {vr(vd,2)}
    s_cmp_eq_u32 s94, 0
    s_cbranch_scc1 {tag}_d
    s_cmp_lg_u64 vcc, 0
    s_cbranch_scc1 {tag}
{tag}_d:
    """)


def flag_store(a, soff, vt):
    a(f"""
    s_mov_b64 exec, 1
    v_mov_b32 v{vt}, s68
    v_mov_b32 v{vt+1}, s69
    v_mov_b32 v{vt+2}, 0
    buffer_store_dwordx2 {vr(vt,2)}, v{vt+2}, s[16:19], {soff} offen sc1
    s_mov_b64 exec, -1
    """)


def mktag(a):
    a("""
    s_mul_i32 s68, s68, 1664525
    s_add_u32 s68, s68, 1013904223
    s_mul_i32 s69, s69, 22695477
    s_add_u32 s69, s69, 1
    """)


def gen_phase1(a):
    DX, DW, RX, RW = 8, 12, 16, 13
    FR = 20
    ACC = 52
    AD = 100
    PC = 116
    XQ = 120
    a(f"""
    s_cmp_ge_u32 s2, 256
    s_cbranch_scc1 L_end
    """)
    stamp(a, 0)
    a(f"""
    s_load_dwordx2 s[8:9], s[0:1], 0
    s_load_dwordx2 s[12:13], s[0:1], 8
    s_load_dwordx2 s[16:17], s[0:1], 88
    s_load_dwordx2 s[20:21], s[0:1], 16
    s_load_dwordx2 s[96:97], s[0:1], 56
    v_lshrrev_b32 v2, 6, v0
    v_and_b32 v1, 63, v0
    s_and_b32 s34, s2, 7
    s_lshr_b32 s29, s2, 3
    v_readfirstlane_b32 s26, v2
    s_mov_b32 s10, {2048*896}
    s_mov_b32 s11, 0x20000
    s_mov_b32 s18, {WS_SIZE}
    s_mov_b32 s19, 0x20000
    s_mov_b32 s22, {448*896}
    s_mov_b32 s23, 0x20000
    s_cmp_ge_u32 s29, 28
    s_cbranch_scc1 L_spare
    v_lshrrev_b32 v{DX}, 3, v1
    v_mul_u32_u24 v15, 896, v{DX}
    v_and_b32 v2, 7, v1
    v_lshrrev_b32 v3, 4, v1
    v_xor_b32 v4, v2, v3
    v_lshl_add_u32 v{DX}, v4, 4, v15
    v_xor_b32 v{DX+1}, 64, v{DX}
    v_add_u32 v{DX+2}, {16*896}, v{DX}
    v_add_u32 v{DX+1}, {8*896}, v{DX+1}
    v_add_u32 v{DX+3}, {16*896}, v{DX+1}
    s_mul_i32 s36, s29, 37
    s_lshr_b32 s36, s36, 8
    s_mul_i32 s37, s36, 7
    s_sub_u32 s70, s29, s37
    s_and_b32 s24, s34, 1
    s_mul_i32 s24, s24, 7
    s_add_u32 s24, s24, s70
    s_lshr_b32 s25, s34, 1
    s_lshl_b32 s25, s25, 2
    s_add_u32 s25, s25, s36
    s_lshl_b32 s71, s34, 2
    s_add_u32 s71, s71, s36
    s_lshl_b32 s28, s36, 1
    s_add_u32 s28, s28, s70
    s_cmp_ge_u32 s28, 7
    s_cselect_b32 s37, 7, 0
    s_sub_u32 s28, s28, s37
    s_lshl_b32 s27, s25, 2
    s_add_u32 s27, s27, s26
    s_mov_b32 s14, {448*2688}
    s_mov_b32 s15, 0x20000
    v_lshrrev_b32 v{DW}, 2, v1
    v_mul_u32_u24 v{DW}, 2688, v{DW}
    v_and_b32 v7, 3, v1
    v_lshl_add_u32 v{DW}, v7, 4, v{DW}
    s_mul_i32 s32, s24, 192
    s_mul_i32 s36, s26, {16*2688}
    s_add_u32 s32, s32, s36
    s_mul_i32 s33, s27, {32*896}
    s_lshl_b32 s35, s26, 14
    s_mul_i32 s36, s26, 3072
    s_add_u32 s36, s36, 65536
    """)

    def offs():
        a(f"""
        s_mul_i32 s30, s28, {64*2688}
        s_lshl_b32 s31, s28, 7
        s_add_u32 s30, s30, s32
        s_add_u32 s31, s31, s33
        s_add_u32 s28, s28, 1
        s_cmp_eq_u32 s28, 7
        s_cselect_b32 s28, 0, s28
        """)
    def dma(g, n):
        if n < 3:
            a(f"""
            s_add_u32 m0, s36, {g*4*3072 + n*960}
            s_nop 0
            buffer_load_dwordx4 v{DW}, s[12:15], s30 offen offset:{64*n} lds
            """)
        else:
            i = n - 3
            a(f"""
            s_add_u32 m0, s35, {(g%4)*4096 + i*1024}
            s_nop 0
            buffer_load_dwordx4 v{DX+i}, s[8:11], s31 offen lds
            """)
    offs()
    a("s_waitcnt lgkmcnt(0)")
    for n in range(7):
        dma(0, n)
    a("s_load_dwordx2 s[68:69], s[16:17], 0")
    offs()
    for n in range(7):
        dma(1, n)
    stamp(a, 1)
    a(f"""
    v_and_b32 v5, 31, v1
    v_lshrrev_b32 v6, 5, v1
    v_bfe_u32 v2, v1, 1, 3
    v_xor_b32 v2, v2, v6
    v_lshlrev_b32 v3, 7, v5
    v_add_u32 v3, s35, v3
    v_lshl_add_u32 v{RX}, v2, 4, v3
    v_xor_b32 v{RX+1}, 32, v{RX}
    v_xor_b32 v{RX+2}, 64, v{RX}
    v_xor_b32 v{RX+3}, 96, v{RX}
    v_bfe_u32 v2, v1, 2, 2
    v_lshlrev_b32 v{RW}, 9, v6
    v_lshl_add_u32 v{RW}, v2, 6, v{RW}
    v_lshl_add_u32 v{RW}, v7, 3, v{RW}
    v_bfe_u32 v2, v1, 4, 1
    v_lshl_add_u32 v{RW}, v2, 5, v{RW}
    v_add_u32 v{RW}, 65536, v{RW}
    v_and_b32 v14, 0x13, v5
    v_bfe_u32 v2, v1, 2, 1
    v_lshl_or_b32 v14, v2, 3, v14
    v_bfe_u32 v2, v1, 3, 1
    v_lshl_or_b32 v14, v2, 2, v14
    v_lshlrev_b32 v14, 4, v14
    s_lshl_b32 s42, s27, 11
    s_add_u32 s42, s42, {WS_Q}
    s_lshl_b32 s43, s27, 12
    s_add_u32 s43, s43, {WS_KV}
    s_mul_i32 s38, s24, 3
    s_cmp_gt_u32 s24, 9
    s_cbranch_scc1 P1_VVV
    s_cmp_eq_u32 s24, 9
    s_cbranch_scc1 P1_QVV
    """)

    def variant(types):
        tag = "P1_" + types
        a(f"{tag}:")
        nq = types.count("Q")
        if nq:
            a(f"v_mov_b32 v{XQ+2}, 0x3f80\nv_mov_b32 v{XQ+3}, 0")
        if nq < 3:
            a(f"""
            v_cmp_eq_u32 vcc, 0, v7
            v_mov_b32 v2, 0x3f803f80
            s_nop 0
            v_cndmask_b32 v{PC}, 0, v2, vcc
            v_cndmask_b32 v{PC+1}, 0, v2, vcc
            v_cndmask_b32 v{PC+2}, 0, v2, vcc
            v_cndmask_b32 v{PC+3}, 0, v2, vcc
            """)
        for j, ty in enumerate(types):
            ad = AD + 2 * j
            if ty == "Q":
                a(f"""
                s_add_u32 s39, s38, {j}
                s_cmp_lt_u32 s39, 14
                s_cselect_b32 s{58+j}, s42, s43
                s_cselect_b32 s{62+2*j}, {f32bits(QSCALE):#x}, 1.0
                s_cselect_b32 s40, 17, 18
                s_cselect_b32 s41, 0, 14
                s_mov_b32 s{63+2*j}, s{62+2*j}
                s_sub_u32 s39, s39, s41
                s_lshl_b32 s41, 1, s40
                s_add_u32 s{91+j}, s{58+j}, s41
                s_lshl_b32 s39, s39, 2
                """)
                for u in range(2):
                    a(f"""
                    s_add_u32 s41, s39, {2*u}
                    v_add_u32 v2, s41, v6
                    v_mul_u32_u24 v3, 37, v2
                    v_lshrrev_b32 v3, 8, v3
                    v_mul_u32_u24 v4, 7, v3
                    v_sub_u32 v2, v2, v4
                    v_lshrrev_b32 v4, 2, v2
                    v_lshl_add_u32 v3, v3, 1, v4
                    v_lshlrev_b32 v3, s40, v3
                    v_add_u32 v3, v3, v14
                    v_cmp_eq_u32 s[{46+4*j+2*u}:{47+4*j+2*u}], 3, v2
                    v_and_b32 v2, 3, v2
                    v_lshl_add_u32 v{ad+u}, v2, 9, v3
                    """)
            else:
                a(f"""
                s_add_u32 s39, s38, {j-28}
                s_mul_i32 s41, s39, {8*147}
                s_lshr_b32 s41, s41, 10
                s_cmp_eq_u32 s39, 6
                s_cselect_b32 s40, 1, 0
                s_cmp_eq_u32 s39, 13
                s_cselect_b32 s40, 1, s40
                v_mul_u32_u24 v2, s40, v6
                v_add_u32 v2, s41, v2
                v_lshlrev_b32 v2, 18, v2
                v_bfe_u32 v3, v1, 2, 2
                v_lshl_add_u32 v2, v3, 9, v2
                v_lshl_add_u32 v2, v7, 4, v2
                v_add_u32 v{ad+1}, {2048+28*16}, v2
                s_lshl_b32 s39, s39, 5
                v_add_u32 v2, s39, v5
                v_mul_u32_u24 v3, 2341, v2
                v_lshrrev_b32 v3, 16, v3
                v_mul_u32_u24 v4, 28, v3
                v_sub_u32 v2, v2, v4
                v_lshlrev_b32 v3, 18, v3
                v_lshl_add_u32 v3, v2, 4, v3
                v_lshl_add_u32 v{ad}, v6, 9, v3
                """)
        a("s_waitcnt lgkmcnt(0)")
        mktag(a)

        def reads(s):
            b = FR + 16 * (s % 2)
            g = s // 4
            if s % 4 == 0:
                a(f"s_waitcnt vmcnt({7 if g < 6 else 0})\ns_barrier")
                if g == 0: stamp(a, 2)
            if s == 14:
                a(f"v_add_u32 v{RW}, {14*3072}, v{RW}")
            o = (s % 14) * 3072
            a(f"ds_read_b128 {vr(b+12,4)}, v{RX+s%4} offset:{(g%4)*4096}")
            for j in range(3):
                a(f"ds_read_b64_tr_b16 {vr(b+4*j,2)}, v{RW} offset:{o+1024*j}")
                a(f"ds_read_b64_tr_b16 {vr(b+4*j+2,2)}, v{RW} offset:{o+1024*j+256}")

        reads(0)
        for s in range(28):
            if s + 1 < 28:
                reads(s + 1)
                a("s_waitcnt lgkmcnt(7)")
            else:
                a("s_waitcnt lgkmcnt(0)")
            b = FR + 16 * (s % 2)
            x = vr(b + 12, 4)
            g = s // 4
            plan = {0: (0, 1, 2), 1: (3, 4), 2: (5, 6), 3: ()}[s % 4]
            for j, ty in enumerate(types):
                w = vr(b + 4 * j, 4)
                acc = vr(ACC + 16 * j, 16)
                c = "0" if s == 0 else acc
                if ty == "Q":
                    a(f"{MF} {acc}, {w}, {x}, {c}")
                else:
                    a(f"{MF} {acc}, {x}, {w}, {c}")
                if g + 2 < 7:
                    if s % 4 == 0 and j == 0:
                        offs()
                    if j < len(plan):
                        dma(g + 2, plan[j])
                if s == 26 and ty == "V":
                    a(f"buffer_store_dwordx4 {vr(PC,4)}, v{AD+2*j+1}, s[16:19], s43 offen sc1")
        a("s_nop 9")
        for j, ty in enumerate(types):
            ad = AD + 2 * j
            acc = ACC + 16 * j
            P = FR + 8 * j
            if ty == "Q":
                for i in range(8):
                    a(f"v_pk_mul_f32 {vr(acc+2*i,2)}, {vr(acc+2*i,2)}, s[{62+2*j}:{63+2*j}]")
                for i in range(8):
                    a(f"v_cvt_pk_bf16_f32 v{P+i}, v{acc+2*i}, v{acc+2*i+1}")
                a(f"""
                v_permlane32_swap_b32 v{P}, v{P+2}
                v_permlane32_swap_b32 v{P+1}, v{P+3}
                v_permlane32_swap_b32 v{P+4}, v{P+6}
                v_permlane32_swap_b32 v{P+5}, v{P+7}
                """)
                for u in range(2):
                    a(f"""
                    s_mov_b64 exec, s[{46+4*j+2*u}:{47+4*j+2*u}]
                    s_cbranch_execz {tag}_e{j}{u}
                    v_mov_b32 v{XQ}, v{P+4*u+2}
                    v_mov_b32 v{XQ+1}, v{P+4*u+3}
                    v_mov_b32 v{P+4*u+2}, v{XQ+2}
                    v_mov_b32 v{P+4*u+3}, 0
                    buffer_store_dwordx4 {vr(XQ,4)}, v{ad+u}, s[16:19], s{91+j} offen sc1
                    {tag}_e{j}{u}:
                    s_mov_b64 exec, -1
                    buffer_store_dwordx4 {vr(P+4*u,4)}, v{ad+u}, s[16:19], s{58+j} offen sc1
                    """)
            else:
                for i in range(8):
                    a(f"v_cvt_pk_bf16_f32 v{P+i}, v{acc+2*i}, v{acc+2*i+1}")
                a(f"buffer_store_dwordx4 {vr(P,4)}, v{ad}, s[16:19], s43 offen offset:2048 sc1")
                a(f"buffer_store_dwordx4 {vr(P+4,4)}, v{ad}, s[16:19], s43 offen offset:3072 sc1")
        if types != "VVV":
            a("s_branch P1_done")

    variant("QQQ")
    variant("QVV")
    variant("VVV")
    a("P1_done:")
    stamp(a, 3)
    a(f"""
    s_lshl_b32 s38, s24, 4
    s_add_u32 s38, s38, s25
    s_lshl_b32 s38, s38, 7
    s_add_u32 s38, s38, {WS_F1}
    s_waitcnt vmcnt(0)
    """)
    stamp(a, 4)
    a(f"""
    s_barrier
    s_cmp_lg_u32 s26, 0
    s_cbranch_scc1 P2_start
    """)
    flag_store(a, "s38", 4)


def gen_spare(a):
    XR = 16
    WV = 72
    AC = 8
    GF, UF = 128, 72
    XS = 16
    G = 184
    VEC = 131072
    KEYS = 139264
    HB = 139776
    SS = 140800
    a(f"""
L_spare:
    s_load_dwordx2 s[24:25], s[0:1], 32
    s_load_dwordx2 s[44:45], s[0:1], 64
    s_load_dwordx2 s[32:33], s[0:1], 40
    s_load_dwordx2 s[36:37], s[0:1], 48
    s_sub_u32 s28, s29, 28
    s_lshl_b32 s30, s34, 2
    s_add_u32 s30, s30, s28
    s_mov_b32 s31, s30
    s_lshl_b32 s60, s30, 2
    s_add_u32 s60, s60, s26
    s_lshl_b32 s60, s60, 4
    s_mul_i32 s61, s60, 896
    s_add_u32 s62, s61, {8*896}
    v_lshrrev_b32 v2, 3, v1
    v_and_b32 v3, 7, v1
    v_mul_u32_u24 v4, 896, v2
    v_lshl_add_u32 v4, v3, 4, v4
    v_lshlrev_b32 v5, 4, v1
    s_lshl_b32 s63, s26, 11
    s_add_u32 s63, s63, {VEC}
    v_mul_u32_u24 v7, 3584, v2
    v_bfe_u32 v6, v1, 4, 1
    v_lshlrev_b32 v6, 2, v6
    v_xor_b32 v6, v6, v3
    v_lshl_add_u32 v7, v6, 4, v7
    s_lshl_b32 s64, s26, 15
    s_mul_i32 s65, s26, {112*3584}
    s_lshl_b32 s40, s31, 7
    s_add_u32 s65, s65, s40
    s_cmp_lt_u32 s31, 28
    s_cselect_b32 s40, {448*3584}, 0
    s_waitcnt lgkmcnt(0)
    s_mov_b32 s4, s24
    s_mov_b32 s5, s25
    s_mov_b32 s6, 896
    s_mov_b32 s7, 0x20000
    s_mov_b32 s46, 896
    s_mov_b32 s47, 0x20000
    s_mov_b32 s34, s40
    s_mov_b32 s35, 0x20000
    s_mov_b32 s38, s40
    s_mov_b32 s39, 0x20000
    s_mov_b32 s12, s96
    s_mov_b32 s13, s97
    s_mov_b32 s14, {1792*896}
    s_mov_b32 s15, 0x20000
    s_load_dwordx2 s[68:69], s[16:17], 0
    s_mov_b32 m0, s63
    s_nop 0
    buffer_load_dwordx4 v5, s[4:7], 0 offen lds
    s_add_u32 m0, s63, 1024
    s_nop 0
    buffer_load_dwordx4 v5, s[44:47], 0 offen lds
    """)
    a(f"""
    s_getpc_b64 s[40:41]
L_pc:
    s_sub_u32 s40, s40, L_pc - {KN}
    s_subb_u32 s41, s41, 0
    s_lshl_b32 s42, s28, 13
    s_lshl_b32 s43, s26, 11
    s_add_u32 s42, s42, s43
    v_lshl_add_u32 v12, v1, 7, s42
    v_cmp_gt_u32 vcc, TEXT_END - {KN}, v12
    s_mov_b32 s42, 0xffff
    s_mov_b32 s43, 0
    s_and_b64 exec, vcc, s[42:43]
    s_cbranch_execz L_pc2
    global_load_dword v13, v12, s[40:41]
L_pc2:
    s_mov_b64 exec, -1
    """)
    def gu(k):
        mat, n = k // 14, k % 14
        a(f"""
        s_add_u32 m0, s64, {mat*16384 + n*1024}
        s_add_u32 s40, s65, {n*8*3584}
        buffer_load_dwordx4 v7, s[{32+4*mat}:{35+4*mat}], s40 offen lds
        """)
    NA, N0, N1, N2 = 0, 5, 8, 20
    for k in range(NA):
        gu(k)
    for i in range(7):
        for u in range(2):
            a(f"buffer_load_dwordx4 {vr(XR+28*u+4*i,4)}, v4, s[8:11], s{61+u} offen offset:{128*i}")
    for k in range(NA, N0):
        gu(k)
    a(f"""
    v_lshl_add_u32 v6, v3, 4, s63
    v_mov_b32 v{AC}, 0
    v_mov_b32 v{AC+1}, 0
    v_mov_b32 v{AC+2}, 0
    v_mov_b32 v{AC+3}, 0
    s_waitcnt vmcnt({14+N0}) lgkmcnt(0)
    """)
    for m in range(2):
        for i in range(7):
            a(f"ds_read_b128 {vr(WV+28*m+4*i,4)}, v6 offset:{1024*m+128*i}")
    mktag(a)
    a(f"""
    v_and_b32 v12, 1, v1
    v_lshl_add_u32 v13, v12, 3, v2
    v_cmp_eq_u32 s[98:99], 1, v12
    v_add_u32 v14, s60, v13
    v_sub_u32 v15, 2047, v14
    s_lshl_b32 s66, s26, 6
    s_add_u32 s66, s66, {KEYS}
    v_lshl_add_u32 v13, v13, 2, s66
    """)
    a("s_waitcnt lgkmcnt(0)")
    def dots(m, staged):
        ng = N0
        for i in range(7):
            if staged:
                a(f"s_waitcnt vmcnt({12 - 2*i + ng})")
            for q in (0, 2):
                for u in range(2):
                    for p in range(2):
                        a(f"v_dot2c_f32_bf16 v{AC+2*u+p}, v{XR+28*u+4*i+q+p}, v{WV+28*m+4*i+q+p}")
            if staged and i >= 1:
                gu(ng); ng += 1
                if i >= 4:
                    gu(ng); ng += 1
        a(f"""
        s_nop 2
        v_add_f32 v{AC}, v{AC}, v{AC+1}
        v_add_f32 v{AC+2}, v{AC+2}, v{AC+3}
        s_nop 0
        """)
        for ctl in ("quad_perm:[1,0,3,2]", "quad_perm:[2,3,0,1]", "row_half_mirror"):
            for k in (0, 2):
                a(f"v_add_f32_dpp v{AC+k}, v{AC+k}, v{AC+k} {ctl} row_mask:0xf bank_mask:0xf")
            a("s_nop 0")
        a(f"v_cndmask_b32 v{AC}, v{AC}, v{AC+2}, s[98:99]")
        return ng
    ng = dots(0, True)
    stamp(a, 2)
    assert ng == 14
    a(f"""
    v_cvt_pk_bf16_f32 v{AC}, v{AC}, v{AC}
    v_ashrrev_i32 v12, 31, v{AC}
    v_or_b32 v12, 0x80000000, v12
    v_xor_b32 v{AC}, v{AC}, v12
    v_and_b32 v{AC}, 0xffff0000, v{AC}
    v_or_b32 v{AC}, v{AC}, v15
    s_mov_b32 exec_lo, 0x03030303
    s_mov_b32 exec_hi, 0x03030303
    ds_write_b32 v13, v{AC}
    s_mov_b64 exec, -1
    v_and_b32 v12, 15, v1
    v_lshl_add_u32 v12, v12, 2, s66
    v_lshrrev_b32 v13, 4, v1
    v_lshlrev_b32 v13, 6, v13
    v_add_u32 v13, {KEYS}, v13
    v_mov_b32 v15, 0
    """)
    gu(14); gu(15)
    a(f"""
    s_waitcnt lgkmcnt(0)
    s_barrier
    ds_read_b32 v224, v12
    """)
    for i in range(4):
        a(f"ds_read_b128 {vr(WV+4*i,4)}, v13 offset:{16*i}")
    gu(16); gu(17)
    a(f"v_mov_b32 v225, s68\ns_waitcnt lgkmcnt(0)")
    for i in range(16 + 2):
        if i < 16:
            a(f"v_cmp_gt_u32 s[{48+2*(i%4)}:{49+2*(i%4)}], v{WV+i}, v224")
        if i >= 2:
            k = i - 2
            a(f"v_addc_co_u32 v15, s[56:57], 0, v15, s[{48+2*(k%4)}:{49+2*(k%4)}]")
    a(f"""
    v_mov_b32 v12, v15
    s_lshl_b32 s40, s30, 7
    s_add_u32 s40, s40, {WS_CAND}
    v_permlane32_swap_b32 v12, v15
    s_nop 1
    v_add_u32 v15, v12, v15
    v_mov_b32 v12, v15
    s_nop 1
    v_permlane16_swap_b32 v12, v15
    s_nop 1
    v_add_u32 v15, v12, v15
    v_cmp_gt_u32 vcc, 8, v15
    v_lshlrev_b32 v15, 2, v15
    v_add_u32 v15, {SS}, v15
    v_lshlrev_b32 v12, 2, v1
    s_and_b64 exec, vcc, 0xffff
    ds_write_b32 v15, v224
    s_mov_b64 exec, -1
    v_add_u32 v12, {SS}, v12
    v_lshlrev_b32 v15, 3, v1
    s_mov_b32 s41, s40
    """)
    gu(18); gu(19)
    a(f"""
    s_cmp_lg_u32 s26, 0
    s_waitcnt lgkmcnt(0)
    s_barrier
    s_cbranch_scc1 S_nc
    s_mov_b64 exec, 0xff
    ds_read_b32 v224, v12
    s_waitcnt lgkmcnt(0)
    buffer_store_dwordx2 v[224:225], v15, s[16:19], s41 offen sc1
    s_mov_b64 exec, -1
S_nc:
    """)
    stamp(a, 3)
    for k in range(20, 28):
        gu(k)
    stamp(a, 9)
    a(f"""
    v_mov_b32 v{AC}, 0
    v_mov_b32 v{AC+1}, 0
    v_mov_b32 v{AC+2}, 0
    v_mov_b32 v{AC+3}, 0
    """)
    dots(1, False)
    a(f"""
    v_lshlrev_b32 v12, 5, v3
    v_lshl_add_u32 v12, v2, 2, v12
    ds_bpermute_b32 v232, v12, v{AC}
    v_mov_b32 v233, s68
    s_cmp_ge_u32 s31, 28
    s_cbranch_scc1 S_done
    v_lshrrev_b32 v11, 1, v1
    v_lshlrev_b32 v11, 7, v11
    v_and_b32 v15, 1, v1
    v_lshl_add_u32 v11, v15, 5, v11
    s_movk_i32 s59, {WS_CAND}
    s_mov_b32 s94, {SPIN}
    buffer_load_dwordx4 v[224:227], v11, s[16:19], s59 offen sc1
    buffer_load_dwordx4 v[228:231], v11, s[16:19], s59 offen offset:16 sc1
    v_lshrrev_b32 v6, 5, v1
    v_and_b32 v12, 3, v1
    v_bfe_u32 v13, v1, 4, 1
    v_bfe_u32 v2, v1, 2, 2
    v_lshlrev_b32 v10, 3, v12
    v_lshl_add_u32 v10, v13, 5, v10
    v_add_u32 v10, s64, v10
    v_lshlrev_b32 v12, 10, v6
    v_lshl_add_u32 v12, v2, 7, v12
    v_add_u32 v12, v12, v10
    v_lshrrev_b32 v13, 1, v2
    v_lshl_add_u32 v12, v13, 6, v12
    v_xor_b32 v13, 64, v12
    s_waitcnt vmcnt(16) lgkmcnt(0)
    """)
    def trd(base, mat):
        for s in range(7):
            for ft in range(2):
                b = base + 8 * s + 4 * ft
                a(f"ds_read_b64_tr_b16 {vr(b,2)}, v{12+ft} offset:{mat*16384 + s*2048}")
                a(f"ds_read_b64_tr_b16 {vr(b+2,2)}, v{12+ft} offset:{mat*16384 + s*2048 + 512}")
            if s % 3 == 2:
                a("s_waitcnt lgkmcnt(2)")
    trd(GF, 0)
    a(f"""
    s_waitcnt vmcnt(0) lgkmcnt(0)
    """)
    stamp(a, 10)
    a(f"""
S_chk:
    v_xor_b32 v225, s68, v225
    v_xor_b32 v227, s68, v227
    v_xor_b32 v229, s68, v229
    v_xor_b32 v231, s68, v231
    v_or3_b32 v225, v225, v227, v229
    v_or_b32 v225, v225, v231
    v_cmp_ne_u32 vcc, 0, v225
    s_sub_u32 s94, s94, 1
    s_cmp_eq_u32 s94, 0
    s_cbranch_scc1 S_polld
    s_cmp_eq_u64 vcc, 0
    s_cbranch_scc1 S_polld
    buffer_load_dwordx4 v[224:227], v11, s[16:19], s59 offen sc1
    buffer_load_dwordx4 v[228:231], v11, s[16:19], s59 offen offset:16 sc1
    s_waitcnt vmcnt(0)
    s_branch S_chk
S_polld:
    """)
    stamp(a, 4)
    K = (224, 226, 228, 230)
    a("v_mov_b32 v15, v224")
    lr = []
    for s in range(7):
        for ft in range(2):
            b = UF + 8 * s + 4 * ft
            lr.append(f"ds_read_b64_tr_b16 {vr(b,2)}, v{12+ft} offset:{16384 + s*2048}")
            lr.append(f"ds_read_b64_tr_b16 {vr(b+2,2)}, v{12+ft} offset:{16384 + s*2048 + 512}")
    for n, ctl in enumerate(("row_shr:1 row_mask:0xf", "row_shr:2 row_mask:0xf", "row_shr:4 row_mask:0xf", "row_shr:8 row_mask:0xf",
                "row_bcast:15 row_mask:0xa", "row_bcast:31 row_mask:0xc")):
        a(lr[2 * n]); a(lr[2 * n + 1])
        a(f"v_max_u32_dpp v15, v15, v15 {ctl} bank_mask:0xf")
    a(lr[12]); a(lr[13])
    a(f"""
    v_readlane_b32 s41, v15, 63
    s_mov_b32 s40, 0
    s_mov_b32 s94, 40
    s_waitcnt lgkmcnt(0)
    """)
    for l in lr[14:]:
        a(l)
    a(f"""
    s_max_u32 s42, s41, 0x800000
    s_sub_u32 s42, s42, 0x800000
    s_add_u32 s41, s41, 1
S_bis:
    v_cmp_le_u32 s[48:49], s42, v{K[0]}
    v_cmp_le_u32 s[50:51], s42, v{K[1]}
    v_cmp_le_u32 s[52:53], s42, v{K[2]}
    v_cmp_le_u32 s[54:55], s42, v{K[3]}
    s_sub_u32 s94, s94, 1
    s_bcnt1_i32_b64 s43, s[48:49]
    s_bcnt1_i32_b64 s56, s[50:51]
    s_bcnt1_i32_b64 s57, s[52:53]
    s_add_u32 s56, s56, s43
    s_bcnt1_i32_b64 s67, s[54:55]
    s_add_u32 s57, s57, s56
    s_add_u32 s67, s67, s57
    s_cmp_ge_u32 s67, 8
    s_cselect_b32 s40, s42, s40
    s_cselect_b32 s41, s41, s42
    s_sub_u32 s42, s41, s40
    s_lshr_b32 s42, s42, 1
    s_add_u32 s42, s42, s40
    s_cmp_eq_u32 s67, 8
    s_cselect_b32 s94, 0, s94
    s_cmp_lg_u32 s94, 0
    s_cbranch_scc1 S_bis
    s_lshl_b32 s40, s26, 5
    s_add_u32 s40, s40, {SS}
    s_waitcnt lgkmcnt(0)
    """)
    for k in range(4):
        base = ["0", "s43", "s56", "s57"][k]
        a(f"""
        v_mov_b32 v15, {base}
        v_mbcnt_lo_u32_b32 v15, s{48+2*k}, v15
        v_mbcnt_hi_u32_b32 v15, s{49+2*k}, v15
        v_and_b32 v15, 7, v15
        v_lshl_add_u32 v15, v15, 2, s40
        s_mov_b64 exec, s[{48+2*k}:{49+2*k}]
        ds_write_b32 v15, v{K[k]}
        s_mov_b64 exec, -1
        """)
    a(f"""
    v_lshl_add_u32 v15, v3, 2, s40
    ds_read_b32 v8, v15
    v_mov_b32 v9, s68
    s_mul_i32 s41, s26, {7*32}
    s_waitcnt lgkmcnt(0)
    v_and_b32 v11, 0x7ff, v8
    v_sub_u32 v11, 2047, v11
    v_mul_u32_u24 v11, 896, v11
    v_lshl_add_u32 v11, v6, 4, v11
    s_mov_b32 exec_lo, 0xff
    s_mov_b32 exec_hi, 0xff
    """)
    for s in range(7):
        a(f"buffer_load_dwordx4 {vr(XS+4*s,4)}, v11, s[8:11], s41 offen offset:{32*s}")
    a("s_mov_b64 exec, -1")
    stamp(a, 5)
    a(f"""
    v_add_u32 v15, s64, v5
    s_add_u32 s40, s31, s26
    s_cmp_lg_u32 s40, 0
    s_cbranch_scc1 S_nosel
    v_lshlrev_b32 v11, 3, v3
    s_mov_b64 exec, 0xff
    buffer_store_dwordx2 v[8:9], v11, s[16:19], 0 offen offset:{WS_SEL} sc1
    s_mov_b64 exec, -1
    s_waitcnt vmcnt(1)
    s_branch S_sel2
S_nosel:
    s_waitcnt vmcnt(0)
S_sel2:
    """)
    stamp(a, 6)
    GA = [184, 200, 216, 48]
    for s in range(7):
        for m in range(2):
            for ft in range(2):
                acc = vr(GA[2 * m + ft], 16)
                fb = (GF if m == 0 else UF) + 8 * s + 4 * ft
                a(f"{MF} {acc}, {vr(XS+4*s,4)}, {vr(fb,4)}, {'0' if s==0 else acc}")
    a(f"""
    v_lshlrev_b32 v13, 3, v0
    v_add_u32 v12, 65536, v13
    v_bfe_u32 v8, v0, 1, 5
    v_lshrrev_b32 v9, 7, v0
    v_lshl_add_u32 v8, v9, 5, v8
    v_lshlrev_b32 v8, 1, v8
    v_bfe_u32 v9, v0, 6, 1
    v_lshl_add_u32 v8, v9, 9, v8
    v_and_b32 v9, 1, v0
    v_lshl_add_u32 v8, v9, 8, v8
    v_add_u32 v8, {HB}, v8
    """)
    for k in range(4):
        a(f"ds_write_b128 v15, {vr(GA[k],4)} offset:{16384 + 1024*k}")
    a("s_waitcnt lgkmcnt(0)")
    stamp(a, 7)
    a("s_barrier")
    R = 16
    for w in range(4):
        for m in range(2):
            a(f"ds_read_b64 {vr(R+8*m+2*w,2)}, v{13 if w < 2 else 12} offset:{(w%2)*32768 + 16384 + 2048*m}")
    a(f"""
    s_waitcnt lgkmcnt(0)
    v_pk_add_f32 {vr(R,2)}, {vr(R,2)}, {vr(R+2,2)}
    v_pk_add_f32 {vr(R+4,2)}, {vr(R+4,2)}, {vr(R+6,2)}
    v_pk_add_f32 {vr(R+8,2)}, {vr(R+8,2)}, {vr(R+10,2)}
    v_pk_add_f32 {vr(R+12,2)}, {vr(R+12,2)}, {vr(R+14,2)}
    v_pk_add_f32 {vr(R,2)}, {vr(R,2)}, {vr(R+4,2)}
    v_pk_add_f32 {vr(R+8,2)}, {vr(R+8,2)}, {vr(R+12,2)}
    v_cvt_pk_bf16_f32 v{R}, v{R}, v{R+1}
    v_cvt_pk_bf16_f32 v{R+8}, v{R+8}, v{R+9}
    v_and_b32 v{R+1}, 0xffff0000, v{R}
    v_lshlrev_b32 v{R}, 16, v{R}
    v_mul_f32 v{R+2}, {f32bits(-LOG2E):#x}, v{R}
    v_mul_f32 v{R+3}, {f32bits(-LOG2E):#x}, v{R+1}
    v_exp_f32 v{R+2}, v{R+2}
    v_exp_f32 v{R+3}, v{R+3}
    v_and_b32 v{R+9}, 0xffff0000, v{R+8}
    v_add_f32 v{R+2}, 1.0, v{R+2}
    v_add_f32 v{R+3}, 1.0, v{R+3}
    v_rcp_f32 v{R+2}, v{R+2}
    v_rcp_f32 v{R+3}, v{R+3}
    v_lshlrev_b32 v{R+8}, 16, v{R+8}
    v_pk_mul_f32 {vr(R,2)}, {vr(R,2)}, {vr(R+2,2)}
    v_cvt_pk_bf16_f32 v{R}, v{R}, v{R+1}
    v_and_b32 v{R+1}, 0xffff0000, v{R}
    v_lshlrev_b32 v{R}, 16, v{R}
    v_pk_mul_f32 {vr(R,2)}, {vr(R,2)}, {vr(R+8,2)}
    v_cvt_pk_bf16_f32 v{R}, v{R}, v{R+1}
    ds_write_b16 v8, v{R}
    ds_write_b16_d16_hi v8, v{R} offset:128
    s_waitcnt lgkmcnt(0)
S_done:
    """)
    stamp(a, 8)
    a(f"""
    s_mov_b32 s95, s31
    s_lshl_b32 s41, s60, 3
    s_add_u32 s41, s41, {WS_GG}
    v_lshlrev_b32 v14, 3, v1
    s_waitcnt lgkmcnt(0)
    s_mov_b64 exec, 0xffff
    buffer_store_dwordx2 v[232:233], v14, s[16:19], s41 offen sc1
    s_mov_b64 exec, -1
    """)
    if common.STAMPS:
        stamp(a, 11)
        stamp_out(a, 1, 15)
        a("s_mov_b64 exec, -1\nv_mbcnt_lo_u32_b32 v1, -1, 0\nv_mbcnt_hi_u32_b32 v1, -1, v1")
    a("""
    s_barrier
    s_branch P2_start
    """)


def gen_attn(a):
    Q, O, S, KV = 16, 48, 112, 176
    VO = 240
    a(f"""
P2_start:
    s_and_b32 s24, s2, 7
    s_lshl_b32 s24, s24, 1
    s_bfe_u32 s34, s2, 0x10003
    s_add_u32 s24, s24, s34
    s_lshr_b32 s25, s2, 4
    v_cmp_gt_u32 vcc, 16, v1
    v_lshrrev_b32 v2, 3, v1
    v_add_u32 v2, 1, v2
    v_bfe_u32 v3, v1, 1, 1
    v_cndmask_b32 v2, v3, v2, vcc
    v_bfe_u32 v3, v1, 2, 1
    v_and_b32 v4, 1, v1
    v_cndmask_b32 v3, v4, v3, vcc
    v_mul_u32_u24 v2, 448, v2
    v_mul_u32_u24 v3, 27, v3
    s_mul_i32 s34, s24, 28
    v_add3_u32 v2, v2, v3, s34
    v_mul_u32_u24 v2, 683, v2
    v_lshrrev_b32 v2, 16, v2
    v_and_b32 v3, 3, v1
    s_lshl_b32 s34, s26, 2
    v_add_u32 v3, s34, v3
    v_mov_b32 v4, s25
    v_cndmask_b32 v3, v4, v3, vcc
    v_lshl_add_u32 v2, v2, 4, v3
    v_lshlrev_b32 v12, 7, v2
    v_lshlrev_b32 v{VO}, 4, v1
    s_lshl_b32 s35, s24, 18
    s_add_u32 s35, s35, {WS_KV}
    s_lshl_b32 s34, s26, 16
    s_add_u32 s34, s34, s35
    s_lshl_b32 s36, s24, 6
    s_lshl_b32 s37, s25, 2
    s_add_u32 s36, s36, s37
    s_lshl_b32 s33, s25, 14
    s_add_u32 s33, s33, s35
    s_lshl_b32 s32, s25, 12
    s_add_u32 s32, s32, s34
    """)
    for i in range(4):
        a(f"""
        s_add_u32 s38, s26, {i+1}
        s_and_b32 s38, s38, 3
        s_add_u32 s38, s38, s36
        s_lshl_b32 s38, s38, 11
        s_add_u32 s{44+i}, s38, {WS_Q}
        """)
    a(f"""
    v_add_u32 v{VO+1}, 4096, v{VO}
    v_add_u32 v{VO+2}, 8192, v{VO}
    v_add_u32 v{VO+3}, 12288, v{VO}
    v_mov_b32 v2, 0xdddddddd
    """)
    for i in range(64):
        a(f"v_mov_b32 v{O+i}, 0")
    for i in range(3):
        a(f"""
        s_add_u32 s38, s26, {i+1}
        s_and_b32 s38, s38, 3
        s_mul_i32 s38, s38, 12288
        s_add_u32 s38, s38, {(2-i)*4096}
        v_add_u32 v{4+i}, s38, v{VO}
        """)
    a(f"""
    s_mul_i32 s38, s26, 12288
    v_add_u32 v7, s38, v{VO}
    s_mov_b32 s40, 3
    v_and_b32 v3, 0x33, v1
    v_bfe_u32 v8, v1, 2, 1
    v_lshl_or_b32 v3, v8, 3, v3
    v_bfe_u32 v8, v1, 3, 1
    v_lshl_or_b32 v3, v8, 2, v3
    v_lshlrev_b32 v3, 4, v3
    v_lshlrev_b32 v13, 7, v1
    s_lshl_b32 s38, s29, 2
    s_add_u32 s38, s38, s26
    s_lshl_b32 s56, s38, 13
    s_sub_u32 s39, s38, 64
    s_and_b32 s42, s2, 7
    s_mul_i32 s41, s42, 28
    s_add_u32 s41, s41, s39
    s_lshl_b32 s41, s41, 13
    s_cmp_lt_u32 s39, 28
    s_cselect_b32 s42, {1792*896}, 0
    s_cmp_lt_u32 s38, 64
    s_cselect_b64 s[52:53], s[20:21], s[96:97]
    s_cselect_b32 s54, s22, s42
    s_cselect_b32 s56, s56, s41
    s_mov_b32 s55, 0x20000
    s_mov_b32 s38, {WS_F1}
    s_mov_b64 exec, 0xfffff
    """)
    poll64(a, "P2_poll", 12, 8, "s38")
    a("s_mov_b64 exec, -1")
    stamp(a, 5)

    def kvload(buf, part, vo, so="s34"):
        a(f"buffer_load_dwordx4 {vr(KV+16*buf+4*part,4)}, v{VO+vo}, s[16:19], {so} offen offset:{1024*part} sc1")
    def qload(i):
        a(f"buffer_load_dwordx4 {vr(Q+8*i,4)}, v{VO}, s[16:19], s{44+i} offen sc1")
        a(f"buffer_load_dwordx4 {vr(Q+8*i+4,4)}, v{VO}, s[16:19], s{44+i} offen offset:1024 sc1")
    def QKa(sb, buf, q):
        a(f"{MF} {vr(S+16*sb,16)}, {vr(KV+16*buf,4)}, {vr(Q+8*q,4)}, 0")
    def QKb(sb, buf, q):
        a(f"{MF} {vr(S+16*sb,16)}, {vr(KV+16*buf+4,4)}, {vr(Q+8*q+4,4)}, {vr(S+16*sb,16)}")
    def PVa(sb, buf, q):
        a(f"{SM} {vr(O+16*q,16)}, {vr(KV+16*buf+8,4)}, {vr(S+16*sb,8)}, v2")
    def PVb(sb, buf, q):
        a(f"{SM} {vr(O+16*q,16)}, {vr(KV+16*buf+12,4)}, {vr(S+16*sb+8,8)}, v2")
    def EX(sb, lo, hi):
        for i in range(lo, hi):
            a(f"v_exp_f32 v{S+16*sb+i}, v{S+16*sb+i}")
    def MAXT(sb, r):
        b = S + 16 * sb
        a(f"""
        v_max3_f32 v{b}, v{b}, v{b+1}, v{b+2}
        v_max3_f32 v{b+3}, v{b+3}, v{b+4}, v{b+5}
        v_max3_f32 v{b+6}, v{b+6}, v{b+7}, v{b+8}
        v_max3_f32 v{b+9}, v{b+9}, v{b+10}, v{b+11}
        v_max3_f32 v{b+12}, v{b+12}, v{b+13}, v{b+14}
        v_max3_f32 v{b}, v{b}, v{b+3}, v{b+15}
        v_max3_f32 v{b+6}, v{b+6}, v{b+9}, v{b+12}
        v_max_f32 v{r}, v{b}, v{b+6}
        """)
    def INS(pairs):
        a("s_mov_b32 exec_lo, 0")
        for q, r in pairs:
            a(f"v_cvt_pk_bf16_f32 v{Q+8*q+6}, -v{r}, 0")
        a("s_mov_b32 exec_lo, -1")

    qload(0)
    kvload(3, 0, 0, "s33"); kvload(3, 1, 0, "s33")
    qload(1)
    kvload(0, 0, 0); kvload(0, 1, 0)
    a("s_waitcnt vmcnt(4)")
    stamp(a, 6)
    QKa(1, 3, 0); QKb(1, 3, 0)
    qload(2); qload(3)
    a("s_waitcnt vmcnt(4)")
    QKa(2, 3, 1); QKb(2, 3, 1)
    QKa(0, 0, 0)
    kvload(0, 2, 0); kvload(0, 3, 0)
    a(f"""
    s_mov_b32 exec_hi, 0
    buffer_load_dword v10, v13, s[16:19], s32 offen sc1
    s_mov_b32 exec_hi, -1
    """)
    MAXT(1, 8)
    INS([(0, 8)])
    a("s_waitcnt vmcnt(3)")
    QKb(0, 0, 0)
    QKa(3, 3, 2); QKb(3, 3, 2)
    for p in range(4):
        kvload(1, p, 1)
    MAXT(2, 9)
    INS([(1, 9)])
    QKa(2, 3, 3); EX(0, 0, 4); QKb(2, 3, 3); EX(0, 4, 8)
    QKa(1, 0, 1)
    for p in range(4):
        kvload(2, p, 2)
    EX(0, 8, 12); QKb(1, 0, 1); EX(0, 12, 16)
    MAXT(3, 8); MAXT(2, 9)
    INS([(2, 8), (3, 9)])

    def slot(u, nxt, prv, extra):
        sb = u % 4
        def ex(p):
            if p in extra:
                extra[p]()
        QKa((u + 1) % 4, *nxt)
        ex(0)
        EX(sb, 0, 4)
        QKb((u + 1) % 4, *nxt)
        ex(1)
        EX(sb, 4, 8)
        PVa((u - 1) % 4, *prv)
        ex(2)
        EX(sb, 8, 12)
        PVb((u - 1) % 4, *prv)
        ex(3)
        EX(sb, 12, 16)

    slot(1, (0, 2), (0, 0), {1: lambda: a("s_waitcnt vmcnt(9)"), 3: lambda: [kvload(3, p, 3) for p in range(4)]})
    slot(2, (0, 3), (0, 1), {3: lambda: a("s_waitcnt vmcnt(8)")})
    slot(3, (1, 0), (0, 2), {3: lambda: a("s_add_u32 s34, s34, 16384")})
    stamp(a, 13)
    a(".p2align 3\nP2_loop:")
    for v in range(16):
        u = 4 + v
        kt, q = u // 4, u % 4
        nxt = (((u + 1) // 4) % 4, (u + 1) % 4)
        prv = (((u - 1) // 4) % 4, (u - 1) % 4)
        extra = {}
        lb = (kt - 1) % 4
        if q == 0:
            extra[3] = lambda lb=lb: [kvload(lb, p, lb) for p in range(4)]
        if q == 2:
            extra[3] = lambda: a("s_waitcnt vmcnt(8)")
        if v == 15:
            extra[3] = lambda: a("s_add_u32 s34, s34, 16384\ns_sub_u32 s40, s40, 1\ns_cmp_lg_u32 s40, 0")
        slot(u, nxt, prv, extra)
    a("s_cbranch_scc1 P2_loop")
    stamp(a, 14)

    seq = [(b, q) for q in range(4) for b in (1, 2, 3)]
    def wr(q, lo, hi):
        for j in range(lo, hi):
            a(f"ds_write_b128 v{4+q}, {vr(O+16*q+4*j,4)} offset:{1024*j}")
    def rd(i, lo, hi):
        for j in range(lo, hi):
            a(f"ds_read_b128 {vr(O+16*i+4*j,4)}, v7 offset:{4096*i+1024*j}")
    a("s_waitcnt vmcnt(4)")
    for t in range(11):
        u = 52 + t
        prv = seq[t - 1] if t > 0 else (0, 3)
        extra = {}
        if t == 0:
            extra[3] = lambda: a("s_waitcnt vmcnt(0)\nbuffer_load_dword v244, v13, s[52:55], s56 offen")
        for q in range(3):
            if t == 4 + 3 * q:
                if q < 2:
                    extra[2] = lambda q=q: wr(q, 0, 1)
                    extra[3] = lambda q=q: wr(q, 1, 2)
                else:
                    extra[2] = lambda q=q: wr(q, 0, 2)
                    extra[3] = lambda q=q: wr(q, 2, 4)
            if t == 5 + 3 * q and q < 2:
                extra[0] = lambda q=q: wr(q, 2, 3)
                extra[1] = lambda q=q: wr(q, 3, 4)
        slot(u, seq[t + 1], prv, extra)
    EX(3, 0, 2)
    PVa(2, *seq[10])
    a("s_waitcnt lgkmcnt(0)\ns_barrier")
    rd(0, 0, 4)
    EX(3, 2, 6)
    PVb(2, *seq[10])
    rd(1, 0, 4)
    EX(3, 6, 10)
    PVa(3, *seq[11])
    rd(2, 0, 4)
    EX(3, 10, 16)
    a("s_waitcnt lgkmcnt(4)")
    a(f"v_pk_add_f32 {vr(O,2)}, {vr(O,2)}, {vr(O+16,2)}")
    PVb(3, *seq[11])
    for i in range(1, 8):
        a(f"v_pk_add_f32 {vr(O+2*i,2)}, {vr(O+2*i,2)}, {vr(O+16+2*i,2)}")
    a("s_waitcnt lgkmcnt(0)")
    for i in range(8):
        a(f"v_pk_add_f32 {vr(O+2*i,2)}, {vr(O+2*i,2)}, {vr(O+32+2*i,2)}")
    for i in (6, 0, 1, 2, 3, 4, 5, 7):
        a(f"v_pk_add_f32 {vr(O+2*i,2)}, {vr(O+2*i,2)}, {vr(O+48+2*i,2)}")
        if i == 6:
            a(f"v_mov_b32 v8, v{O+12}\nv_mov_b32 v9, v{O+12}")
        if i == 1:
            a("v_permlane32_swap_b32 v8, v9")
        if i == 3:
            a("v_rcp_f32 v10, v9")
    T = S
    a(f"""
    v_pk_add_f32 {vr(T,2)}, {vr(O,2)}, {vr(O+2,2)}
    v_pk_add_f32 {vr(T+2,2)}, {vr(O+4,2)}, {vr(O+6,2)}
    v_pk_add_f32 {vr(T+4,2)}, {vr(O+8,2)}, {vr(O+10,2)}
    v_pk_add_f32 {vr(T+6,2)}, {vr(O+12,2)}, {vr(O+14,2)}
    s_mov_b32 s42, {f32bits(2.0**60):#x}
    v_pk_add_f32 {vr(T,2)}, {vr(T,2)}, {vr(T+2,2)}
    v_pk_add_f32 {vr(T+4,2)}, {vr(T+4,2)}, {vr(T+6,2)}
    v_cmp_gt_f32 s[44:45], s42, v9
    v_pk_add_f32 {vr(T,2)}, {vr(T,2)}, {vr(T+4,2)}
    v_cmp_gt_f32 s[46:47], s42, v10
    v_add_f32 v{T}, v{T}, v{T+1}
    s_movk_i32 s43, 0x1f8
    v_cmp_class_f32 vcc, v{T}, s43
    s_and_b64 s[44:45], s[44:45], s[46:47]
    s_lshl_b32 s38, s25, 2
    s_and_b64 s[44:45], s[44:45], vcc
    s_cmp_eq_u64 s[44:45], -1
    s_cbranch_scc0 P2_fallback
P2_finish:
    s_add_u32 s38, s38, s26
    s_lshl_b32 s38, s38, 4
    s_add_u32 s39, s38, s24
    s_lshl_b32 s38, s39, 11
    s_add_u32 s38, s38, {WS_O}
    """)
    for i in range(4):
        a(f"v_pk_mul_f32 {vr(O+2*i,2)}, {vr(O+2*i,2)}, v[10:11] op_sel_hi:[1,0]")
    for i in range(4):
        a(f"v_cvt_pk_bf16_f32 v{T+i}, v{O+2*i}, v{O+2*i+1}")
    a(f"buffer_store_dwordx4 {vr(T,4)}, v3, s[16:19], s38 offen sc1")
    for i in range(4, 8):
        a(f"v_pk_mul_f32 {vr(O+2*i,2)}, {vr(O+2*i,2)}, v[10:11] op_sel_hi:[1,0]")
    for i in range(4, 8):
        a(f"v_cvt_pk_bf16_f32 v{T+i}, v{O+2*i}, v{O+2*i+1}")
    a(f"""
    s_mov_b32 exec_lo, 0
    v_mov_b32 v{T+6}, 0
    s_mov_b32 exec_lo, -1
    buffer_store_dwordx4 {vr(T+4,4)}, v3, s[16:19], s38 offen offset:1024 sc1
    s_lshl_b32 s60, s39, 7
    s_add_u32 s60, s60, {WS_F2}
    """)
    stamp(a, 7)

    def fallback():
        Q3 = Q + 24
        a(f"""
P2_fallback:
        s_mov_b32 exec_lo, 0
        v_mov_b32 v{Q3+6}, 0
        s_mov_b32 exec_lo, -1
        s_mov_b32 s34, s35
        s_mov_b32 s40, 64
        v_mov_b32 v12, 0xff800000
P2_fb1:
        """)
        kvload(0, 0, 0); kvload(0, 1, 0)
        a("s_waitcnt vmcnt(0)")
        QKa(0, 0, 3); QKb(0, 0, 3)
        a("s_nop 15")
        for i in range(8):
            a(f"v_max3_f32 v12, v12, v{S+2*i}, v{S+2*i+1}")
        a(f"""
        s_add_u32 s34, s34, 4096
        s_sub_u32 s40, s40, 1
        s_cmp_lg_u32 s40, 0
        s_cbranch_scc1 P2_fb1
        v_mov_b32 v13, v12
        s_nop 1
        v_permlane32_swap_b32 v12, v13
        s_nop 1
        v_max_f32 v12, v12, v13
        s_mov_b32 s34, s35
        s_mov_b32 s40, 64
        """)
        for i in range(16):
            a(f"v_mov_b32 v{O+i}, 0")
        a("P2_fb2:")
        for p in range(4):
            kvload(0, p, 0)
        a("s_waitcnt vmcnt(0)")
        QKa(0, 0, 3); QKb(0, 0, 3)
        a("s_nop 15")
        for i in range(16):
            a(f"v_sub_f32 v{S+i}, v{S+i}, v12")
        EX(0, 0, 16)
        a("s_nop 1")
        PVa(0, 0, 0); PVb(0, 0, 0)
        a(f"""
        s_add_u32 s34, s34, 4096
        s_sub_u32 s40, s40, 1
        s_cmp_lg_u32 s40, 0
        s_cbranch_scc1 P2_fb2
        s_nop 15
        v_mov_b32 v8, v{O+12}
        v_mov_b32 v9, v{O+12}
        s_nop 1
        v_permlane32_swap_b32 v8, v9
        s_nop 1
        v_rcp_f32 v10, v9
        s_nop 0
        s_branch P2_finish
        """)
    return fallback


def gen_phase3(a):
    ACC = 16
    XR = 32
    BX = 40
    FR = 56
    YR = 176
    NW0 = 8
    a(f"""
    s_cmp_ge_u32 s29, 28
    s_cbranch_scc1 P3_spare
    s_load_dwordx2 s[4:5], s[0:1], 72
    s_and_b32 s27, s26, 1
    s_lshr_b32 s28, s26, 1
    s_lshl_b32 s30, s71, 1
    s_add_u32 s30, s30, s27
    v_lshrrev_b32 v5, 2, v1
    s_lshl_b32 s38, s30, 5
    v_add_u32 v10, s38, v5
    v_mul_u32_u24 v4, 896, v10
    v_and_b32 v8, 3, v1
    v_lshl_add_u32 v4, v8, 4, v4
    s_lshl_b32 s31, s70, 7
    s_lshl_b32 s38, s28, 6
    s_add_u32 s31, s31, s38
    s_add_u32 s32, s31, {16*896}
    v_lshlrev_b32 v10, 3, v10
    v_and_b32 v0, 7, v1
    v_lshlrev_b32 v11, 3, v0
    s_movk_i32 s38, {WS_GG}
    buffer_load_dwordx4 {vr(XR,4)}, v4, s[8:11], s31 offen
    buffer_load_dwordx4 {vr(XR+4,4)}, v4, s[8:11], s32 offen
    s_mov_b32 s94, {SPIN}
    buffer_load_dwordx2 v[100:101], v10, s[16:19], s38 offen sc1
    buffer_load_dwordx2 v[102:103], v10, s[16:19], s38 offen offset:128 sc1
    buffer_load_dwordx2 v[104:105], v11, s[16:19], 0 offen offset:{WS_SEL} sc1
    v_lshrrev_b32 v7, 3, v1
    v_mul_u32_u24 v7, 896, v7
    v_bfe_u32 v9, v1, 4, 1
    v_lshlrev_b32 v2, 2, v9
    v_xor_b32 v2, v2, v0
    v_lshl_add_u32 v7, v2, 4, v7
    s_lshl_b32 s33, s26, 10
    s_add_u32 s33, s33, {WB}
    s_mul_i32 s37, s26, {8*896}
    s_lshl_b32 s39, s70, 7
    s_add_u32 s37, s37, s39
    """)
    for n in range(14):
        a(f"""
        s_add_u32 m0, s33, {n*4096}
        s_add_u32 s39, s37, {n*32*896}
        buffer_load_dwordx4 v7, s[20:23], s39 offen lds
        """)
        if n == NW0 - 1:
            a(f"s_waitcnt vmcnt({5+NW0})")
            flag_store(a, "s60", 106)
            stamp(a, 8)
    a(f"""
    s_barrier
    v_lshlrev_b32 v3, 4, v1
    v_lshrrev_b32 v6, 5, v1
    s_lshl_b32 s39, s27, 15
    v_add_u32 v14, s39, v3
    v_bfe_u32 v2, v1, 2, 2
    v_lshlrev_b32 v15, 7, v2
    v_lshl_add_u32 v15, v8, 3, v15
    v_lshl_add_u32 v15, v9, 5, v15
    v_lshrrev_b32 v2, 1, v2
    v_xor_b32 v2, s28, v2
    v_lshl_add_u32 v15, v2, 6, v15
    v_add_u32 v15, {WB}, v15
    v_lshl_add_u32 v9, v6, 9, v15
    s_lshl_b32 s35, s28, 10
    s_add_u32 s35, s35, s39
    s_lshl_b32 s36, s71, 16
    s_add_u32 s36, s36, s35
    s_add_u32 s36, s36, {WS_O}
    s_mul_i32 s48, s26, 2560
    s_add_u32 s48, s48, {TB}
    v_and_b32 v126, 31, v1
    v_mul_u32_u24 v126, 80, v126
    v_lshl_add_u32 v126, v6, 3, v126
    v_add_u32 v126, s48, v126
    v_mul_u32_u24 v127, 80, v5
    v_lshl_add_u32 v127, v8, 4, v127
    v_add_u32 v127, s48, v127
    s_waitcnt vmcnt(15)
P3_gchk:
    v_xor_b32 v106, s68, v101
    v_xor_b32 v107, s68, v103
    v_xor_b32 v108, s68, v105
    v_or3_b32 v106, v106, v107, v108
    v_cmp_ne_u32 vcc, 0, v106
    s_sub_u32 s94, s94, 1
    s_cmp_eq_u32 s94, 0
    s_cbranch_scc1 P3_gok
    s_cmp_eq_u64 vcc, 0
    s_cbranch_scc1 P3_gok
    buffer_load_dwordx2 v[100:101], v10, s[16:19], s38 offen sc1
    buffer_load_dwordx2 v[102:103], v10, s[16:19], s38 offen offset:128 sc1
    buffer_load_dwordx2 v[104:105], v11, s[16:19], 0 offen offset:{WS_SEL} sc1
    s_waitcnt vmcnt(0)
    s_branch P3_gchk
P3_gok:
    v_and_b32 v2, 0x7ff, v104
    v_sub_u32 v2, 2047, v2
    v_lshrrev_b32 v10, 5, v2
    v_cmp_eq_u32 vcc, s30, v10
    v_cvt_pk_bf16_f32 v12, v100, v102
    v_and_b32 v13, 0xffff0000, v12
    v_lshlrev_b32 v12, 16, v12
    s_and_b32 s44, vcc_lo, 0xff
    v_mul_f32 v12, {f32bits(-LOG2E):#x}, v12
    v_mul_f32 v13, {f32bits(-LOG2E):#x}, v13
    v_exp_f32 v12, v12
    v_exp_f32 v13, v13
    s_mov_b32 s6, {2048*896}
    s_mov_b32 s7, 0x20000
    v_add_f32 v12, 1.0, v12
    v_add_f32 v13, 1.0, v13
    v_rcp_f32 v12, v12
    v_rcp_f32 v13, v13
    v_lshlrev_b32 v10, 7, v1
    v_cvt_pk_bf16_f32 v12, v12, v13
    v_and_b32 v13, 0xffff0000, v12
    v_lshlrev_b32 v12, 16, v12
    v_sub_f32 v124, 1.0, v12
    v_sub_f32 v125, 1.0, v13
    v_cvt_pk_bf16_f32 v124, v124, v125
    v_and_b32 v125, 0xffff0000, v124
    v_lshlrev_b32 v124, 16, v124
    s_lshl_b32 s38, s30, 11
    s_add_u32 s38, s38, {WS_F2}
    s_mov_b64 exec, 0xffff
    """)
    poll64(a, "P3_poll", 10, 106, "s38")
    a("s_mov_b64 exec, -1\ns_waitcnt lgkmcnt(0)")
    stamp(a, 9)

    def dO(h):
        a(f"""
        s_add_u32 m0, s35, {h*2048}
        s_add_u32 s39, s36, {h*2048}
        buffer_load_dwordx4 v3, s[16:19], s39 offen sc1 lds
        buffer_load_dwordx4 v3, s[16:19], s39 offen offset:2048 sc1 lds
        """)
    for h in (0, 2, 4, 6):
        dO(h)
    for i in range(8):
        sel = "op_sel:[0,1] op_sel_hi:[1,1]" if i >= 4 else "op_sel_hi:[1,0]"
        a(f"""
        v_lshlrev_b32 v{BX+2*i}, 16, v{XR+i}
        v_and_b32 v{BX+2*i+1}, 0xffff0000, v{XR+i}
        v_pk_mul_f32 {vr(BX+2*i,2)}, {vr(BX+2*i,2)}, v[124:125] {sel}
        v_cvt_pk_bf16_f32 v{BX+2*i}, v{BX+2*i}, v{BX+2*i+1}
        v_and_b32 v{BX+2*i+1}, 0xffff0000, v{BX+2*i}
        v_lshlrev_b32 v{BX+2*i}, 16, v{BX+2*i}
        """)
    D = 4
    def reads(ks):
        b = FR + 8 * (ks % (D + 1))
        h, s = ks // 2, ks % 2
        if h % 4 == 0 and s == 0:
            g = h // 4
            a(f"s_waitcnt vmcnt({4 if g < 3 else 0})\ns_barrier")
            if g == 0: stamp(a, 10)
            if g < 2:
                dO(8 + 4 * g); dO(10 + 4 * g)
            if g == 3:
                a("s_cmp_lg_u32 s44, 0\ns_cbranch_scc1 P3_y1\nP3_y1d:")
        o = (28 * h + 16 * s) * 128
        a(f"""
        ds_read_b128 {vr(b,4)}, v14 offset:{1024*ks}
        ds_read_b64_tr_b16 {vr(b+4,2)}, v9 offset:{o}
        ds_read_b64_tr_b16 {vr(b+6,2)}, v{15 if s else 9} offset:{o+1024}
        """)
    for ks in range(D):
        reads(ks)
    for ks in range(32):
        if ks + D < 32:
            reads(ks + D)
        n = min(D, 31 - ks) * 3
        b = FR + 8 * (ks % (D + 1))
        a(f"s_waitcnt lgkmcnt({n})")
        a(f"{MF} {vr(ACC,16)}, {vr(b+4,4)}, {vr(b,4)}, {'0' if ks==0 else vr(ACC,16)}")
    a("s_cmp_lg_u32 s44, 0\ns_cbranch_scc1 P3_y2\ns_nop 9\nP3_y2d:")
    stamp(a, 11)
    for i in range(4):
        a(f"""
        v_cvt_pk_bf16_f32 v{ACC+4*i}, v{ACC+4*i}, v{ACC+4*i+1}
        v_cvt_pk_bf16_f32 v{ACC+4*i+1}, v{ACC+4*i+2}, v{ACC+4*i+3}
        ds_write_b64 v126, {vr(ACC+4*i,2)} offset:{16*i}
        """)
    a(f"""
    ds_read_b128 {vr(XR,4)}, v127
    ds_read_b128 {vr(XR+4,4)}, v127 offset:{16*80}
    """)
    for half in range(2):
        a(f"s_waitcnt lgkmcnt({1-half})")
        sel = "op_sel:[0,1] op_sel_hi:[1,1]" if half else "op_sel_hi:[1,0]"
        for j in range(4):
            i = 4 * half + j
            r = ACC + 2 * i
            a(f"""
            v_lshlrev_b32 v{r}, 16, v{XR+i}
            v_and_b32 v{r+1}, 0xffff0000, v{XR+i}
            v_pk_mul_f32 {vr(r,2)}, {vr(r,2)}, v[12:13] {sel}
            v_cvt_pk_bf16_f32 v{r}, v{r}, v{r+1}
            v_and_b32 v{r+1}, 0xffff0000, v{r}
            v_lshlrev_b32 v{r}, 16, v{r}
            v_pk_add_f32 {vr(r,2)}, {vr(r,2)}, {vr(BX+2*i,2)}
            v_cvt_pk_bf16_f32 v{XR+i}, v{r}, v{r+1}
            """)
        a(f"buffer_store_dwordx4 {vr(XR+4*half,4)}, v4, s[4:7], s{31+half} offen")
    stamp(a, 12)
    stamp_out(a, 0, 15)
    a("L_end:\ns_endpgm")

    HB = 139776
    a(f"""
P3_spare:
    s_cmp_lt_u32 s95, 28
    s_cbranch_scc1 P3_moe
    s_waitcnt vmcnt(0)
    """)
    flag_store(a, "s60", 106)
    a(f"""
    s_cmp_lg_u32 s2, 255
    s_cbranch_scc1 L_end2
    v_lshrrev_b32 v2, 4, v1
    s_lshl_b32 s38, s26, 2
    v_add_u32 v2, s38, v2
    v_lshlrev_b32 v2, 6, v2
    v_and_b32 v3, 15, v1
    v_add_u32 v2, v2, v3
    v_lshlrev_b32 v10, 7, v2
    s_mov_b32 s38, {WS_F2}
    """)
    poll64(a, "P3_epoll", 10, 106, "s38")
    a(f"""
    s_barrier
    s_cmp_lg_u32 s26, 0
    s_cbranch_scc1 L_end2
    """)
    flag_store(a, "0", 106)
    a("L_end2:\ns_endpgm")

    a(f"""
P3_moe:
    v_lshrrev_b32 v14, 4, v1
    v_lshlrev_b32 v15, 2, v14
    v_and_b32 v9, 15, v1
    v_xor_b32 v15, v15, v9
    v_mul_u32_u24 v14, 896, v14
    v_lshl_add_u32 v14, v15, 4, v14
    s_mul_i32 s58, s95, {64*896}
    s_lshl_b32 s40, s26, 8
    s_add_u32 s58, s58, s40
    s_lshl_b32 s64, s26, 14
    s_add_u32 s64, s64, 65536
    """)
    for n in range(16):
        a(f"""
        s_add_u32 m0, s64, {n*1024}
        s_add_u32 s40, s58, {n*4*896}
        buffer_load_dwordx4 v14, s[12:15], s40 offen lds
        """)
        if n == 7:
            a("s_waitcnt vmcnt(8)")
            flag_store(a, "s60", 106)
    a(f"""
    v_lshrrev_b32 v6, 5, v1
    v_and_b32 v3, 7, v1
    v_lshlrev_b32 v13, 7, v3
    v_lshl_add_u32 v13, v6, 4, v13
    v_add_u32 v13, {HB}, v13
    """)
    R = 16
    for s in range(4):
        a(f"ds_read_b128 {vr(R+4*s,4)}, v13 offset:{32*s}")
    a(f"""
    v_and_b32 v12, 3, v1
    v_bfe_u32 v13, v1, 4, 1
    v_bfe_u32 v2, v1, 2, 2
    v_lshlrev_b32 v10, 3, v12
    v_lshl_add_u32 v10, v13, 5, v10
    v_add_u32 v10, s64, v10
    v_lshlrev_b32 v44, 11, v6
    v_lshl_add_u32 v44, v2, 8, v44
    v_lshl_add_u32 v44, v2, 6, v44
    v_add_u32 v44, v44, v10
    v_xor_b32 v45, 64, v44
    v_xor_b32 v46, 128, v44
    v_xor_b32 v47, 192, v44
    v_lshlrev_b32 v5, 4, v1
    s_mul_i32 s40, s95, 28672
    s_lshl_b32 s41, s26, 13
    s_add_u32 s40, s40, s41
    s_add_u32 s40, s40, {WS_Y}
    s_add_u32 s41, s40, 4096
    """)
    DF = 176
    Y = 48
    ST = 32
    for k in (1, 3, 5, 7):
        a(f"v_mov_b32 v{ST+k}, s68")
    def dtr(s):
        for t in range(4):
            b = DF + 16 * s + 4 * t
            a(f"ds_read_b64_tr_b16 {vr(b,2)}, v{44+t} offset:{s*4096}")
            a(f"ds_read_b64_tr_b16 {vr(b+2,2)}, v{44+t} offset:{s*4096+1024}")
    def mm(s):
        for t in range(4):
            a(f"{MF} {vr(Y+16*t,16)}, {vr(R+4*s,4)}, {vr(DF+16*s+4*t,4)}, {'0' if s==0 else vr(Y+16*t,16)}")
    a("s_waitcnt vmcnt(9) lgkmcnt(0)")
    dtr(0)
    a("s_waitcnt lgkmcnt(4)")
    dtr(1)
    a("s_waitcnt lgkmcnt(8)")
    mm(0)
    a("s_waitcnt vmcnt(4) lgkmcnt(0)")
    dtr(2)
    mm(1)
    a("s_waitcnt vmcnt(0) lgkmcnt(0)")
    dtr(3)
    mm(2)
    a("s_waitcnt lgkmcnt(0)")
    mm(3)
    a("s_nop 8")
    for t in range(4):
        if t == 2:
            a("s_cmp_eq_u32 s26, 3\ns_cbranch_scc1 L_end3")
        a(f"""
        v_mov_b32 v{ST}, v{Y+16*t}
        v_mov_b32 v{ST+2}, v{Y+16*t+1}
        buffer_store_dwordx4 {vr(ST,4)}, v5, s[16:19], s{40+t//2} offen offset:{2048*(t%2)} sc1
        v_mov_b32 v{ST+4}, v{Y+16*t+2}
        v_mov_b32 v{ST+6}, v{Y+16*t+3}
        buffer_store_dwordx4 {vr(ST+4,4)}, v5, s[16:19], s{40+t//2} offen offset:{2048*(t%2)+1024} sc1
        """)
    a("L_end3:")
    stamp(a, 8)
    stamp_out(a, 2, 9)
    a("s_endpgm")

    def yload():
        a(f"""
        s_ff1_i32_b32 s46, s44
        s_lshr_b32 s47, s46, 2
        s_lshl_b32 s47, s47, 9
        s_bfe_u32 s49, s46, 0x10001
        s_lshl_b32 s49, s49, 10
        s_add_u32 s47, s47, s49
        s_and_b32 s49, s46, 1
        s_lshl_b32 s49, s49, 3
        s_add_u32 s47, s47, s49
        s_add_u32 s47, s47, s45
        """)
        for i in range(14):
            a(f"buffer_load_dwordx2 {vr(YR+2*i,2)}, v10, s[16:19], s47 offen sc1")
            if i < 13:
                a(f"s_add_u32 s47, s47, {2*28672}")
    a(f"""
P3_y1:
    v_mul_u32_u24 v10, 28672, v6
    v_and_b32 v108, 31, v1
    v_lshl_add_u32 v10, v108, 4, v10
    v_lshl_add_u32 v108, v108, 2, s48
    v_lshl_add_u32 v109, v8, 5, s48
    s_lshl_b32 s45, s31, 5
    s_add_u32 s45, s45, {WS_Y}
    s_mov_b32 s94, {SPIN}
    """)
    yload()
    a(f"""
    s_branch P3_y1d
P3_yloop:
    """)
    yload()
    a(f"""
P3_y2:
    v_readlane_b32 s49, v104, s46
    v_readlane_b32 s50, v2, s46
    s_sub_u32 s94, s94, 1
    s_nop 1
    s_lshr_b32 s51, s49, 16
    s_and_b32 s52, s51, 0x8000
    s_cmp_lg_u32 s52, 0
    s_cselect_b32 s52, s52, 0xffff
    s_xor_b32 s51, s51, s52
    s_lshl_b32 s51, s51, 16
    v_mov_b32 v110, s51
    v_mul_f32 v110, {f32bits(-LOG2E):#x}, v110
    v_exp_f32 v110, v110
    s_and_b32 s50, s50, 31
    v_add_f32 v110, 1.0, v110
    v_rcp_f32 v110, v110
    v_mov_b32 v111, s68
    v_cvt_pk_bf16_f32 v110, v110, v110
    v_and_b32 v110, 0xffff0000, v110
    s_waitcnt vmcnt(0)
    v_xor_b32 v106, v111, v{YR+1}
    """)
    for i in range(1, 14):
        a(f"v_bitop3_b32 v106, v106, v111, v{YR+2*i+1} bitop3:0xf6")
    a(f"""
    v_cmp_ne_u32 vcc, 0, v106
    s_cmp_eq_u32 s94, 0
    s_cbranch_scc1 P3_yok
    s_cmp_lg_u64 vcc, 0
    s_cbranch_scc1 P3_yloop
P3_yok:
    s_bitset0_b32 s44, s46
    """)
    for i in range(1, 14):
        d = YR + 2 * (i % 2)
        if i > 1:
            a(f"v_add_f32 v{d}, v{d}, v{YR+2*i}")
    a(f"""
    v_add_f32 v{YR}, v{YR}, v{YR+2}
    v_mov_b32 v{YR+1}, v{YR}
    s_nop 1
    v_permlane32_swap_b32 v{YR}, v{YR+1}
    s_nop 1
    v_add_f32 v{YR}, v{YR}, v{YR+1}
    v_cvt_pk_bf16_f32 v{YR}, v{YR}, v{YR}
    v_and_b32 v{YR}, 0xffff0000, v{YR}
    v_mul_f32 v{YR}, v{YR}, v110
    v_cvt_pk_bf16_f32 v{YR}, v{YR}, v{YR}
    v_and_b32 v{YR}, 0xffff0000, v{YR}
    ds_write_b32 v108, v{YR}
    ds_read_b128 {vr(YR,4)}, v109
    ds_read_b128 {vr(YR+4,4)}, v109 offset:16
    s_and_b32 s51, s50, 15
    v_cmp_eq_u32 vcc, s51, v5
    s_cmp_ge_u32 s50, 16
    s_waitcnt lgkmcnt(0)
    s_mov_b64 exec, vcc
    s_cbranch_scc1 P3_yhi
    """)
    for half in range(2):
        if half:
            a("P3_yhi:")
        sel = "op_sel:[0,1] op_sel_hi:[1,1]" if half else "op_sel_hi:[1,0]"
        for j in range(4):
            x = XR + 4 * half + j
            b = BX + 2 * (4 * half + j)
            a(f"""
            v_lshlrev_b32 v{b}, 16, v{x}
            v_and_b32 v{b+1}, 0xffff0000, v{x}
            v_pk_add_f32 {vr(b,2)}, {vr(b,2)}, {vr(YR+2*j,2)}
            v_cvt_pk_bf16_f32 v{b}, v{b}, v{b+1}
            v_and_b32 v{b+1}, 0xffff0000, v{b}
            v_lshlrev_b32 v{b}, 16, v{b}
            v_pk_mul_f32 {vr(b,2)}, {vr(b,2)}, v[124:125] {sel}
            v_cvt_pk_bf16_f32 v{b}, v{b}, v{b+1}
            v_and_b32 v{b+1}, 0xffff0000, v{b}
            v_lshlrev_b32 v{b}, 16, v{b}
            """)
        a(f"""
        s_mov_b64 exec, -1
        s_cmp_lg_u32 s44, 0
        s_cbranch_scc1 P3_yloop
        s_branch P3_y2d
        """)


def main(path):
    a = A()
    hdr = f"""; generated by gen3.py
; @launch grid=(256,1,1) block=(256,1,1) lds={LDS}
.amdgcn_target "amdgcn-amd-amdhsa--gfx950"
.text
"""
    head(a, KN)
    gen_phase1(a)
    fb = gen_attn(a)
    gen_phase3(a)
    gen_spare(a)
    a("TEXT_END:")
    fb()
    txt = hdr + a.text() + '.section .rodata,"a"\n' + kd(KN, 248, 100)
    open(path, "w").write(txt)


if __name__ == "__main__":
    main(sys.argv[1] if len(sys.argv) > 1 and not sys.argv[1].startswith("--") else f"cdna_kernels/{NAME}.s")
```
